```python
import torch

def _softmax(x, axis=-1):
    return torch.softmax(x, dim=axis)
def _gelu(x):
    return torch.nn.functional.gelu(x, approximate="tanh")
def _silu(x):
    return torch.nn.functional.silu(x)
def _sigmoid(x):
    return torch.sigmoid(x)
def _layernorm(x, axis=-1, eps=1e-5):
    m = x.mean(dim=axis, keepdim=True)
    v = x.var(dim=axis, keepdim=True, unbiased=False)
    return (x - m) / torch.sqrt(v + eps)
def _scatter_add(tgt, idx, src, axis=0):
    return tgt.clone().index_add_(axis, idx, src)
def _segment_sum(src, seg, n):
    out = torch.zeros((n,) + src.shape[1:], dtype=src.dtype)
    return out.index_add_(0, seg, src)
def _pad(x, pw):
    flat = tuple(v for pair in reversed(pw) for v in pair)
    return torch.nn.functional.pad(x, flat)

kernel_name = 'gated_mix__sliding_local_dilated__spectral_fnet__prompt'

def setup_inputs():

    _w = (lambda a: (lambda t: t.to(torch.bfloat16) if t.is_floating_point() else t)(torch.as_tensor(a)))
    def _A_setup():
        B, S, D = 1, 2048, 640
        return {
            "x": _w((lambda *s: torch.randn(*s, dtype=torch.bfloat16) * 0.05)(B, S, D)),
            "wqkv": _w((lambda *s: torch.randn(*s, dtype=torch.bfloat16) * 1.6)(D, 3 * D)),
            "wo": _w((lambda *s: torch.randn(*s, dtype=torch.bfloat16) * 0.2)(D, D)),
        }
    _A_in = _A_setup()

    def _B_setup():
        B, S, D = 1, 2048, 640
        ns = torch.arange(S)[:, None] * torch.arange(S)[None, :]
        nd = torch.arange(D)[:, None] * torch.arange(D)[None, :]
        Ws_re = torch.cos(-2.0 * torch.pi * ns / S).to(float)
        Ws_im = torch.sin(-2.0 * torch.pi * ns / S).to(float)
        Wd_re = torch.cos(-2.0 * torch.pi * nd / D).to(float)
        Wd_im = torch.sin(-2.0 * torch.pi * nd / D).to(float)
        return {
            "x": _w((lambda *s: torch.randn(*s, dtype=torch.bfloat16) * 0.05)(B, S, D)),
            "dft_seq_re": _w(Ws_re),
            "dft_seq_im": _w(Ws_im),
            "dft_hid_re": _w(Wd_re),
            "dft_hid_im": _w(Wd_im),
        }
    _B_in = _B_setup()

    return {
        "A_x": _A_in["x"],
        "A_wqkv": _A_in["wqkv"],
        "A_wo": _A_in["wo"],
        "B_x": _B_in["x"],
        "B_dft_seq_re": _B_in["dft_seq_re"],
        "B_dft_seq_im": _B_in["dft_seq_im"],
        "B_dft_hid_re": _B_in["dft_hid_re"],
        "B_dft_hid_im": _B_in["dft_hid_im"],
        "gate_w": _w((lambda *s: torch.randn(*s, dtype=torch.bfloat16) * 0.05)(640) * 16.0),
    }

def reference(A_x, A_wqkv, A_wo, B_x, B_dft_seq_re, B_dft_seq_im, B_dft_hid_re, B_dft_hid_im, gate_w):
    def _A_ref(x, wqkv, wo):
        B, S, D = x.shape
        H = 32; Dh = D // H
        W, dil = 8, 2
        qkv = (lambda x, *d: x.permute(*d))((x @ wqkv).reshape(B, S, 3, H, Dh), 2, 0, 3, 1, 4)
        q, k, v = qkv[0], qkv[1], qkv[2]
        scale = Dh ** -0.5
        pos = torch.arange(S)
        off = torch.arange(W) * dil
        idx = pos[:, None] - off[None, :]
        mask = idx >= 0
        idx_c = torch.where(mask, idx, 0).reshape(-1)
        kg = k[:, :, idx_c, :].reshape(B, H, S, W, Dh)
        vg = v[:, :, idx_c, :].reshape(B, H, S, W, Dh)
        logits = torch.einsum("bhsd,bhswd->bhsw", q, kg) * scale
        logits = torch.where(mask[None, None, :, :], logits, -1e9)
        attn = _softmax(logits, axis=-1)
        o = torch.einsum("bhsw,bhswd->bhsd", attn, vg)
        return (lambda x, *d: x.permute(*d))(o, 0, 2, 1, 3).reshape(B, S, D) @ wo

    def _B_ref(x, dft_seq_re, dft_seq_im, dft_hid_re, dft_hid_im):
        a = torch.einsum("bsd,ed->bse", x, dft_hid_re)
        b = torch.einsum("bsd,ed->bse", x, dft_hid_im)
        y = torch.einsum("ts,bse->bte", dft_seq_re, a) - torch.einsum("ts,bse->bte", dft_seq_im, b)
        return y

    x = A_x
    g = _sigmoid((x * gate_w).sum(-1, keepdims=True))
    a = _A_ref(x, A_wqkv, A_wo)
    b = _B_ref(x, B_dft_seq_re, B_dft_seq_im, B_dft_hid_re, B_dft_hid_im)
    return g * a + (1 - g) * b
```

```python
import re
TRANS = ('v_exp_f32', 'v_log_f32', 'v_rcp_f32', 'v_rsq_f32', 'v_sqrt_f32', 'v_sin_f32', 'v_cos_f32')
def regs(tok):
    tok = tok.strip()
    tok = tok.lstrip('-')
    m = re.fullmatch(r'abs\((.*)\)|\|(.*)\|', tok)
    if m: tok = m.group(1) or m.group(2)
    m = re.fullmatch(r'([vas])(\d+)', tok)
    if m: return {(m.group(1), int(m.group(2)))}
    m = re.fullmatch(r'([vas])\[(\d+):(\d+)\]', tok)
    if m: return {(m.group(1), i) for i in range(int(m.group(2)), int(m.group(3)) + 1)}
    if tok == 'vcc': return {('s', 'vcc_lo'), ('s', 'vcc_hi')}
    if tok in ('vcc_lo', 'vcc_hi'): return {('s', tok)}
    if tok == 'exec': return {('s', 'exec')}
    if tok == 'm0': return {('s', 'm0')}
    return set()
class Ins:
    def __init__(self, text):
        self.text = text
        t = text.split(';')[0].strip()
        self.label = t.endswith(':')
        self.directive = t.startswith('.') and not self.label
        self.op = '' if (self.label or self.directive or not t) else t.split()[0]
        self.w = set(); self.r = set(); self.kind = 'none'; self.srcc = set(); self.passes = 0; self.dpp = False
        self.states = 0 if not self.op else 1
        if not self.op: return
        op = re.sub(r'_(e32|e64|dpp|sdwa)$', '', self.op)
        self.base = op
        rest = t[len(self.op):].strip()
        ops = [x.strip() for x in re.split(r',(?![^\[]*\])', rest)] if rest else []
        if ops:
            last = ops[-1].split()
            mods = last[1:]; ops[-1] = last[0] if last else ''
        else: mods = []
        self.mods = mods
        R = [regs(x) for x in ops]
        if op == 's_nop':
            self.states = int(ops[0], 0) + 1; self.kind = 'salu'
        elif op.startswith('v_mfma'):
            self.kind = 'mfma'; self.w = R[0]; self.r = R[1] | R[2] | R[3]; self.srcc = R[3]; self.ab = R[1] | R[2]
            self.passes = 8 if '32x32' in op else 4
        elif op.startswith('v_'):
            self.kind = 'valu'
            self.dpp = self.op.endswith('_dpp') or any(m.startswith(('row_', 'quad_perm', 'wave_')) for m in mods)
            if op.startswith('v_permlane') and 'swap' in op:
                self.w = R[0] | R[1]; self.r = R[0] | R[1]
            elif op.startswith(('v_add_co', 'v_sub_co', 'v_addc_co', 'v_subb_co')):
                self.w = R[0] | R[1]; self.r = set().union(*R[2:])
            else:
                self.w = R[0]; self.r = set().union(*R[1:]) if len(R) > 1 else set()
                if op.startswith(('v_fmac', 'v_dot2c', 'v_pk_fmac', 'v_writelane')) or self.dpp: self.r |= R[0]
                if op.startswith('v_cmpx'): self.w |= {('s', 'exec')}
        elif op.startswith('ds_'):
            self.kind = 'ds'
            if op.startswith(('ds_read', 'ds_bpermute', 'ds_permute', 'ds_swizzle')):
                self.w = R[0]; self.r = set().union(*R[1:])
            else: self.r = set().union(*R)
        elif op.startswith(('buffer_', 'global_')):
            self.kind = 'vmem'
            self.lds = 'lds' in mods or '_lds_' in op
            if 'load' in op and not self.lds:
                self.w = R[0]; self.r = set().union(*R[1:])
            else:
                self.r = set().union(*R) if R else set()
                if 'atomic' in op and 'sc0' in mods: self.w = R[0]
            self.wide = R[0] if ('store' in op and op.endswith(('x3', 'x4')) and op.startswith('buffer')) else (R[1] if ('store' in op and op.endswith(('x3', 'x4'))) else set())
            if self.lds: self.r |= {('s', 'm0')}
        elif op.startswith('s_'):
            self.kind = 'salu'
            if op.startswith(('s_cmp', 's_cbranch', 's_branch', 's_waitcnt', 's_barrier', 's_endpgm', 's_setprio', 's_sleep', 's_bitcmp')):
                self.r = set().union(*R) if R else set()
            else:
                self.w = R[0] if R else set(); self.r = set().union(*R[1:]) if len(R) > 1 else set()
                if 'saveexec' in op: self.w |= {('s', 'exec')}
        else:
            raise ValueError('unknown op ' + text)
def isv(s): return {x for x in s if x[0] in 'va'}
def iss(s): return {x for x in s if x[0] == 's'}
def need(p, c):
    n = 0
    if p.kind == 'valu':
        vw = isv(p.w); sw = iss(p.w)
        if c.kind == 'mfma' and vw & c.r: n = max(n, 2)
        if c.kind == 'valu':
            if c.base.startswith('v_permlane') and vw & c.r: n = max(n, 2)
            if c.dpp and vw & c.r: n = max(n, 2)
            if c.base in ('v_readlane_b32', 'v_readfirstlane_b32') and vw & c.r: n = max(n, 1)
            if p.base in TRANS and vw & c.r: n = max(n, 1)
            if sw & c.r: n = max(n, 4 if c.base in ('v_readlane_b32', 'v_writelane_b32') else 2)
            if p.base.startswith('v_dot') and vw & (c.r | c.w) and not (c.base == p.base): n = max(n, 3)
            if ('s', 'exec') in sw: n = max(n, 5)
        if c.kind == 'mfma' and ('s', 'exec') in sw: n = max(n, 4)
        if c.kind == 'vmem' and sw & c.r: n = max(n, 5)
        if c.kind == 'salu' and sw & c.r: n = max(n, 2)
        if p.base.startswith('v_dot') and c.kind in ('vmem', 'ds', 'mfma') and vw & c.r: n = max(n, 3)
    if p.kind == 'mfma':
        big = 8 if p.passes == 4 else 12
        if c.kind == 'mfma':
            if p.w & c.ab: n = max(n, big)
            if p.w & c.srcc and not (p.w == c.srcc and p.passes == c.passes): n = max(n, big - 2)
            if p.w & c.w and not (p.w == c.srcc): n = max(n, big - 2)
        elif c.kind in ('valu', 'vmem', 'ds'):
            if p.w & (c.r | c.w): n = max(n, big)
            if c.kind == 'valu' and p.srcc & c.w: n = max(n, 3 if p.passes == 4 else 7)
    if p.kind == 'salu' and ('s', 'm0') in p.w and c.kind == 'vmem' and getattr(c, 'lds', False): n = max(n, 1)
    if p.kind == 'vmem' and p.wide & c.w and c.kind in ('valu', 'mfma', 'ds', 'vmem'): n = max(n, 2)
    return n
class Asm:
    def __init__(self):
        self.lines = []
    def __call__(self, text):
        for l in text.split('\n'):
            l = l.strip()
            if l: self.lines.append(l)
    def raw(self, text): self.lines.append(('raw', text))
    def render(self, verbose=False):
        out = []; hist = []; npad = 0
        for l in self.lines:
            if isinstance(l, tuple): out.append(l[1]); continue
            if l.startswith(';'): out.append(l); continue
            i = Ins(l)
            if i.op:
                dist = 0; pad = 0
                for p in reversed(hist):
                    pad = max(pad, need(p, i) - dist)
                    dist += p.states
                    if dist > 20: break
                if pad > 0:
                    nop = Ins(f's_nop {pad-1}'); hist.append(nop); out.append('    ' + nop.text + ' ; hz'); npad += pad
                hist.append(i)
                if i.op in ('s_endpgm', 's_branch'): hist = []
                out.append('    ' + l)
            else: out.append(l)
        if verbose: print('hazard pad states', npad)
        return '\n'.join(out) + '\n'
def v(a, n=1): return f'v{a}' if n == 1 else f'v[{a}:{a+n-1}]'
def s(a, n=1): return f's{a}' if n == 1 else f's[{a}:{a+n-1}]'
def interleave(main, fill, start=0, every=1):
    out = []; fill = list(fill)
    for i, m in enumerate(main):
        out.append(m)
        if i >= start and (i - start) % every == 0 and fill: out.append(fill.pop(0))
    return out + fill
```

```python
import sys, struct, math
from dsl import *
def f32(x): return '0x%08x' % struct.unpack('<I', struct.pack('<f', x))[0]
WS_O, WS_V, WS_G, WS_ST = 0, 0x280000, 0x500000, 0x600000
NBX = 2621440
OOB = '0x80000000'
class Cfg:
    D1 = 2
    DF = 3
    D2 = 3
    st = 'sc1'
    sto = 'sc1'
    stamps = False
    rot = True
    codepf = True
    wopf = True

def srd(a, d, ptr, size, off=0):
    if off:
        a(f's_add_u32 {s(d)}, {s(ptr)}, {off}\ns_addc_u32 {s(d+1)}, {s(ptr+1)}, 0')
    else:
        a(f's_mov_b32 {s(d)}, {s(ptr)}\ns_mov_b32 {s(d+1)}, {s(ptr+1)}')
    a(f's_mov_b32 {s(d+2)}, {size}\ns_mov_b32 {s(d+3)}, 0x20000')

def stamp(a, cfg, i):
    if cfg.stamps: a(f's_memrealtime {s(80+2*i, 2)}')
def stamp_out(a, cfg, kern, wsptr, n, tmp=240):
    if not cfg.stamps: return
    a('s_waitcnt lgkmcnt(0)')
    srd(a, 76, wsptr, 0x100000, WS_ST)
    a(f's_lshl_b32 s75, s2, 3\ns_add_u32 s75, s75, s24\ns_lshl_b32 s75, s75, 5\ns_add_u32 s75, s75, {kern*0x10000}')
    a('s_mov_b64 exec, 1')
    a(f'v_mov_b32 {v(tmp+8)}, 0')
    for i in range(8): a(f'v_mov_b32 {v(tmp+i)}, {s(80+2*i) if i < n else 0}')
    a(f'buffer_store_dwordx4 {v(tmp,4)}, {v(tmp+8)}, s[76:79], s75 offen')
    a(f'buffer_store_dwordx4 {v(tmp+4,4)}, {v(tmp+8)}, s[76:79], s75 offen offset:16')

def dma(a, vo, srdn, so, m0step=1024, flags=''):
    a(f'buffer_load_dwordx4 {v(vo)}, {s(srdn,4)}, {so} offen {flags} lds')
    if m0step: a(f's_addk_i32 m0, {m0step}')

XB1, WB1, OB1 = 0, 43008, 43008 + 61440
LDS1 = OB1 + 112 * 176
def k1(a, cfg):
    a('k1_kernel:')
    stamp(a, cfg, 0)
    a('s_load_dwordx4 s[4:7], s[0:1], 0\ns_load_dwordx2 s[8:9], s[0:1], 88\ns_load_dwordx2 s[10:11], s[0:1], 64\ns_load_dwordx2 s[44:45], s[0:1], 16')
    a('s_cmp_ge_u32 s2, 256\ns_cbranch_scc1 L1_exit')
    a('v_lshrrev_b32 v1, 6, v0\nv_and_b32 v0, 63, v0\nv_readfirstlane_b32 s24, v1')
    a('s_and_b32 s25, s2, 7\ns_lshr_b32 s26, s2, 3')
    if cfg.codepf:
        a('s_cmp_lg_u32 s24, 3\ns_cbranch_scc1 L1_nopf')
        a('s_getpc_b64 s[28:29]\nL1_pc:\ns_sub_u32 s28, s28, L1_pc-k1_kernel\ns_subb_u32 s29, s29, 0')
        a('s_mov_b32 s30, L_code_end-k1_kernel\ns_mov_b32 s31, 0x20000')
        a('s_lshl_b32 s27, s26, 10\nv_lshlrev_b32 v2, 6, v0\ns_mov_b64 exec, 0xffff')
        a('buffer_load_dword v255, v2, s[28:31], s27 offen\ns_mov_b64 exec, -1')
        a('L1_nopf:')
    a('s_cmp_ge_u32 s26, 20\ns_cbranch_scc1 L1_notq')
    a('''s_lshr_b32 s33, s26, 2        ; a = j>>2
         s_and_b32 s34, s26, 3         ; b = j&3
         s_and_b32 s35, s25, 1
         s_lshl_b32 s35, s35, 2
         s_add_u32 s35, s35, s34       ; hg
         s_bfe_u32 s36, s25, 0x10001   ; (xcd>>1)&1
         s_mul_i32 s37, s36, 5
         s_add_u32 s37, s37, s33       ; i
         s_mul_i32 s38, s37, 102
         s_min_u32 s38, s38, 912       ; j0
         s_lshr_b32 s39, s25, 2        ; par
         s_lshl_b32 s40, s38, 1
         s_add_u32 s40, s40, s39
         s_mul_i32 s40, s40, 1280
         s_mul_i32 s41, s35, 160       ; hg*160''')
    if cfg.rot:
        a('''s_add_u32 s42, s33, s34
             s_cmp_ge_u32 s42, 5
             s_cselect_b32 s43, 5, 0
             s_sub_u32 s42, s42, s43
             s_lshl_b32 s42, s42, 1
             s_add_u32 s42, s42, s36''')
    else: a('s_mov_b32 s42, 0')
    a('s_cmp_lt_u32 s24, 4\ns_cbranch_scc1 L1_qc')
    a('s_cmp_eq_u32 s24, 7\ns_cbranch_scc1 L1_qx')
    D = cfg.D1
    def out_addr():
        a('s_sub_u32 s46, s24, 4\ns_lshl_b32 s46, s46, 6\nv_add_u32 v30, s46, v0')
        a('s_cmp_eq_u32 s37, 0\ns_cselect_b32 s47, 0, 7')
        a('s_movk_i32 s48, 109\ns_cmp_eq_u32 s37, 8\ns_cselect_b32 s48, 103, s48\ns_cmp_eq_u32 s37, 9\ns_cselect_b32 s48, 112, s48')
        a('s_min_u32 s49, s48, 64')
        a('s_add_u32 s50, s40, s41')
        for u, (c0, hi) in enumerate([(0, 49), (256, 49), (512, 49), (640, 48), (896, 48)]):
            a(f'''v_add_u32 v31, {c0}, v30
                  v_mul_u32_u24 v32, 6554, v31
                  v_lshrrev_b32 v32, 16, v32          ; row
                  v_mul_u32_u24 v33, 10, v32
                  v_sub_u32 v33, v31, v33
                  v_lshlrev_b32 v33, 4, v33           ; q*16
                  v_mul_u32_u24 v34, 176, v32
                  v_add_u32 v34, v34, v33
                  v_add_u32 {v(40+u)}, {OB1}, v34
                  v_mul_u32_u24 v34, 2560, v32
                  v_add_u32 v34, v34, v33
                  v_cmp_le_u32 vcc, s47, v32
                  v_cmp_gt_u32 s[52:53], {s(hi)}, v32
                  s_and_b64 vcc, vcc, s[52:53]
                  v_mov_b32 v35, {OOB}
                  v_cndmask_b32 {v(45+u)}, v35, v34, vcc''')
        srd(a, 20, 8, NBX, WS_O)
    a('s_sub_u32 s46, s24, 4\ns_mul_i32 s47, s46, 320')
    for u in range(5):
        a(f'''v_add_u32 v2, s47, v0
              v_add_u32 v2, {64*u}, v2
              v_mul_u32_u24 v3, 2185, v2
              v_lshrrev_b32 v3, 16, v3            ; rho
              v_mul_u32_u24 v4, 30, v3
              v_sub_u32 v4, v2, v4                ; q
              v_mul_u32_u24 v5, 26, v4
              v_lshrrev_b32 v5, 8, v5             ; seg
              v_mul_u32_u24 v5, 1120, v5
              v_lshl_add_u32 v5, v4, 4, v5
              v_and_b32 v6, 12, v3
              v_lshlrev_b32 v6, 1, v6
              v_lshrrev_b32 v7, 4, v3
              v_lshl_add_u32 v6, v7, 2, v6
              v_and_b32 v7, 3, v3
              v_add_u32 v6, v6, v7                ; k
              v_mul_u32_u24 v6, 3840, v6
              v_add_u32 {v(10+u)}, v6, v5''')
    a(f's_mul_i32 s54, s42, {2*122880}\ns_add_u32 s54, s54, s41\ns_add_u32 s55, s41, {20*122880}')
    a(f's_mul_i32 s56, s46, 5120\ns_add_u32 s56, s56, {WB1}')
    a('s_waitcnt lgkmcnt(0)')
    srd(a, 16, 6, 640 * 3840)
    def wgrp(t):
        a(f's_add_u32 m0, s56, {(t % 4) * 15360}')
        for u in range(5): dma(a, 10 + u, 16, 's54', 1024 if u < 4 else 0)
        a(f's_add_u32 s54, s54, 122880\ns_cmp_eq_u32 s54, s55\ns_cselect_b32 s54, s41, s54')
    for t in range(D): wgrp(t)
    out_addr()
    for t in range(20):
        a(f's_waitcnt vmcnt({5 * min(D - 1, 19 - t)})\ns_barrier')
        if t + D < 20: wgrp(t + D)
    a('s_branch L1_qstore')
    a('L1_qx:')
    a('''v_lshrrev_b32 v2, 3, v0
         v_mul_u32_u24 v2, 2560, v2
         v_and_b32 v3, 7, v0
         v_lshrrev_b32 v4, 4, v0
         v_xor_b32 v3, v3, v4
         v_lshl_add_u32 v10, v3, 4, v2
         v_xor_b32 v11, 64, v10
         v_add_u32 v11, 20480, v11''')
    for pp in range(2, 14): a(f'v_add_u32 {v(10+pp)}, 40960, {v(8+pp)}')
    a('s_lshl_b32 s54, s42, 7\ns_add_u32 s54, s54, s40\ns_add_u32 s55, s40, 1280')
    a('s_waitcnt lgkmcnt(0)')
    srd(a, 12, 4, NBX)
    def xhalf(h):
        if h > 19: return
        a(f's_mov_b32 m0, {XB1 + ((h >> 1) % 3) * 14336 + (h & 1) * 7168}')
        for u in range(7): dma(a, 10 + 7 * (h & 1) + u, 12, 's54', 1024 if u < 6 else 0)
        if h & 1: a('s_add_u32 s54, s54, 128\ns_cmp_eq_u32 s54, s55\ns_cselect_b32 s54, s40, s54')
    for h in range(D + 1): xhalf(h)
    out_addr()
    for t in range(20):
        n = max(0, min(19, t + D) - (t + 1))
        a(f's_waitcnt vmcnt({7 * n})\ns_barrier')
        xhalf(t + D + 1)
    a('L1_qstore:')
    stamp(a, cfg, 1)
    a('s_barrier')
    for u in range(3): a(f'ds_read_b128 {v(52+4*u,4)}, {v(40+u)}')
    for u in range(3): a(f's_waitcnt lgkmcnt({2-u})\nbuffer_store_dwordx4 {v(52+4*u,4)}, {v(45+u)}, s[20:23], s50 offen {cfg.st}')
    a('s_barrier')
    for u in range(3, 5): a(f'ds_read_b128 {v(52+4*u,4)}, {v(40+u)}')
    for u in range(3, 5): a(f's_waitcnt lgkmcnt({4-u})\nbuffer_store_dwordx4 {v(52+4*u,4)}, {v(45+u)}, s[20:23], s50 offen {cfg.st}')
    if cfg.stamps:
        stamp(a, cfg, 2); a('s_waitcnt vmcnt(0)'); stamp(a, cfg, 3); stamp_out(a, cfg, 0, 8, 4)
    a('s_endpgm')
    a('L1_qc:')
    XA0, XA1, WA, TA, MC, MP, AND, SEL, ONE, OA = 200, 201, 202, 203, 204, 208, 212, 214, 216, 218
    KOP, QOP, VM, VX, TMP = 220, 112, 140, 156, 172
    F = [(112, 140), (156, 184)]
    a(f'''v_and_b32 v1, 15, v0            ; i
          v_lshrrev_b32 v2, 4, v0         ; g
          v_lshrrev_b32 v3, 1, v1
          v_xor_b32 v3, v3, v2
          v_lshlrev_b32 v3, 4, v3
          v_lshl_add_u32 {v(XA0)}, v1, 7, v3
          v_xor_b32 {v(XA1)}, 64, {v(XA0)}
          v_lshrrev_b32 v3, 2, v0
          v_mul_u32_u24 v3, 480, v3
          s_mul_i32 s46, s24, 40
          s_add_u32 s47, s46, {WB1}
          v_add_u32 v3, s47, v3
          v_and_b32 v4, 3, v0             ; c
          v_lshl_add_u32 {v(WA)}, v4, 3, v3
          v_add_u32 v3, 32, v3
          v_add_u32 v5, 320, v3
          v_cmp_eq_u32 vcc, 1, v4
          v_cndmask_b32 {v(TA)}, v3, v5, vcc
          v_add_u32 v5, 160, v3
          v_cmp_eq_u32 vcc, 2, v4
          v_cndmask_b32 {v(TA)}, {v(TA)}, v5, vcc
          v_mul_u32_u24 v3, 176, v1
          v_lshl_add_u32 v3, v2, 3, v3
          s_add_u32 s47, s46, {OB1}
          v_add_u32 {v(OA)}, s47, v3
          v_lshlrev_b32 v3, 2, v2
          v_sub_u32 v3, v1, v3            ; d0 = i - 4g
          v_mov_b32 v5, 0xff800000
          v_mov_b32 v6, 0xffff
          v_mov_b32 v7, 0xffff0000''')
    for r in range(4):
        a(f'''v_subrev_u32 v4, {r}, v3    ; d = i - kc
              v_cmp_gt_u32 vcc, 8, v4
              v_cndmask_b32 {v(MC+r)}, v5, 0, vcc
              v_cmp_gt_i32 vcc, -8, v4
              v_cndmask_b32 {v(MP+r)}, v5, 0, vcc
              v_cmp_le_i32 vcc, 0, v4''')
        if r % 2 == 0: a(f'v_cndmask_b32 {v(AND + r//2)}, 0, v6, vcc')
        else: a(f'v_cndmask_b32 v8, 0, v7, vcc\nv_or_b32 {v(AND + r//2)}, {v(AND + r//2)}, v8')
    a(f'''v_mov_b32 {v(SEL)}, 0
          v_mov_b32 {v(SEL+1)}, 0
          v_mov_b32 {v(ONE)}, 0x3f803f80
          v_mov_b32 {v(ONE+1)}, 0x3f803f80
          s_mov_b32 s46, 0x3f80
          s_mov_b32 s47, 0x3f800000
          v_writelane_b32 {v(SEL)}, s46, 16
          v_writelane_b32 {v(SEL)}, s47, 17
          v_writelane_b32 {v(SEL+1)}, s46, 18
          v_writelane_b32 {v(SEL+1)}, s47, 19''')
    for b in range(7): a(f'v_mov_b32 {v(KOP+4*b+2)}, 0\nv_mov_b32 {v(KOP+4*b+3)}, 0')
    a(f's_mov_b32 s46, {f32(20 ** -0.5 * math.log2(math.e))}')
    a('s_waitcnt lgkmcnt(0)')
    def reads(t):
        fx, fw = F[t % 2]
        xo = XB1 + ((t >> 1) % 3) * 14336
        wo_ = (t % 4) * 15360
        r = []
        xr = [f'ds_read_b128 {v(fx+4*b,4)}, {v(XA1 if t & 1 else XA0)} offset:{xo + 2048*b}' for b in range(7)]
        wr = []
        for tt, (ad, o) in enumerate([(WA, 0), (WA, 160), (WA, 320), (TA, 0)]):
            wr.append(f'ds_read_b64_tr_b16 {v(fw+4*tt,2)}, {v(ad)} offset:{wo_+o}')
            wr.append(f'ds_read_b64_tr_b16 {v(fw+4*tt+2,2)}, {v(ad)} offset:{wo_+o+7680}')
        return wr + xr
    def mfmas(t):
        fx, fw = F[t % 2]
        m = []
        for b in range(7):
            for tt in range(4):
                acc = v(16*b + 4*tt, 4); c = acc if t else '0'
                A, B = (v(fw+4*tt,4), v(fx+4*b,4)) if tt != 2 else (v(fx+4*b,4), v(fw+4*tt,4))
                m.append(f'v_mfma_f32_16x16x32_bf16 {acc}, {A}, {B}, {c}')
        return m
    a('.p2align 3')
    for t in range(20):
        a('s_barrier')
        if t == 0: stamp(a, cfg, 1)
        for l in (interleave(mfmas(t-1), reads(t)) if t else reads(0)): a(l)
        a('s_waitcnt lgkmcnt(0)')
    z = [f'v_mov_b32 {v(QOP+4*b+2+q)}, 0' for b in range(7) for q in range(2)]
    stamp(a, cfg, 2)
    for l in interleave(mfmas(19), z): a(l)
    def cvt(d, s0): return f'v_cvt_pk_bf16_f32 {v(d)}, {v(s0)}, {v(s0+1)}'
    M = TMP; P = TMP + 4; R = TMP + 12
    for bi, blks in enumerate([[0, 1, 2, 3], [4, 5, 6]]):
        for b in blks:
            for (d, tt) in [(QOP+4*b, 0), (KOP+4*b, 1), (VM+2*b, 2)]:
                a(cvt(d, 16*b+4*tt)); a(cvt(d+1, 16*b+4*tt+2))
        a('s_mov_b64 exec, 0xffffffffffff' if False else 's_mov_b32 exec_hi, 0xffff')
        for b in blks: a(cvt(QOP+4*b+2, 16*b+12)); a(cvt(QOP+4*b+3, 16*b+14))
        a('s_mov_b32 exec_hi, -1')
        for b in blks:
            for q in (2, 3): a(f'v_permlane32_swap_b32 {v(QOP+4*b+q)}, {v(KOP+4*b+q)}')
        for b in blks:
            a(f'v_mfma_f32_16x16x32_bf16 {v(16*b,4)}, {v(KOP+4*b,4)}, {v(QOP+4*b,4)}, {v(MC,4)}')
            if b: a(f'v_mfma_f32_16x16x32_bf16 {v(16*b+4,4)}, {v(KOP+4*b-4,4)}, {v(QOP+4*b,4)}, {v(MP,4)}')
        for b in blks:
            a(f'v_mfma_f32_16x16x16_bf16 {v(16*b+8,4)}, {v(QOP+4*b+2,2)}, {v(SEL,2)}, 0')
        for n, b in enumerate(blks):
            if b:
                for r in range(4): a(f'v_max_f32 {v(16*b+r)}, {v(16*b+r)}, {v(16*b+4+r)}')
            a(f'v_max3_f32 {v(M+n)}, {v(16*b)}, {v(16*b+1)}, {v(16*b+2)}\nv_max_f32 {v(M+n)}, {v(M+n)}, {v(16*b+3)}')
        vx = [cvt(VX+2*b+q, 16*b+8+2*q) for b in blks for q in range(2)]
        def fill(n):
            for _ in range(n):
                if vx: a(vx.pop(0))
        a(f'v_permlane32_swap_b32 {v(M)}, {v(M+1)}'); fill(1)
        a(f'v_permlane32_swap_b32 {v(M+2)}, {v(M+3)}')
        a(f'v_max_f32 {v(M)}, {v(M)}, {v(M+1)}\nv_max_f32 {v(M+2)}, {v(M+2)}, {v(M+3)}'); fill(2)
        a(f'v_permlane16_swap_b32 {v(M)}, {v(M+2)}')
        a(f'v_max_f32 {v(M+1)}, {v(M)}, {v(M+2)}')
        a(f'v_mul_f32 {v(M)}, s46, {v(M+1)}\nv_mul_f32 {v(M+2)}, s46, {v(M+1)}'); fill(2)
        a(f'v_permlane16_swap_b32 {v(M)}, {v(M+2)}')
        a(f'v_mov_b32 {v(M+1)}, {v(M)}\nv_mov_b32 {v(M+3)}, {v(M+2)}'); fill(2)
        a(f'v_permlane32_swap_b32 {v(M)}, {v(M+1)}\nv_permlane32_swap_b32 {v(M+2)}, {v(M+3)}'); fill(8)
        for n, b in enumerate(blks):
            for r in range(4): a(f'v_fma_f32 {v(16*b+r)}, {v(16*b+r)}, s46, -{v(M+n)}')
            for r in range(4): a(f'v_exp_f32 {v(16*b+r)}, {v(16*b+r)}')
        for n, b in enumerate(blks):
            a(cvt(P+2*n, 16*b)); a(cvt(P+2*n+1, 16*b+2))
            if b:
                for q in range(2): a(f'v_and_b32 {v(16*b+14+q)}, {v(P+2*n+q)}, {v(AND+q)}')
                for q in range(2): a(f'v_xor_b32 {v(16*b+12+q)}, {v(P+2*n+q)}, {v(16*b+14+q)}')
        for n, b in enumerate(blks):
            a(f'v_mfma_f32_16x16x16_bf16 {v(16*b+8,4)}, {v(ONE,2)}, {v(P+2*n,2)}, 0')
        for n, b in enumerate(blks):
            for (dst, vv) in [(16*b, VM), (16*b+4, VX)]:
                if b: a(f'v_mfma_f32_16x16x32_bf16 {v(dst,4)}, {v(vv+2*b-2,4)}, {v(16*b+12,4)}, 0')
                else: a(f'v_mfma_f32_16x16x16_bf16 {v(dst,4)}, {v(vv,2)}, {v(P,2)}, 0')
        for n, b in enumerate(blks): a(f'v_rcp_f32 {v(R+n)}, {v(16*b+8)}')
        for n, b in enumerate(blks):
            for r in range(8): a(f'v_mul_f32 {v(16*b+r)}, {v(16*b+r)}, {v(R+n)}')
            for q in range(4): a(cvt(16*b+8+q, 16*b+2*q))
            a(f'ds_write_b64 {v(OA)}, {v(16*b+8,2)} offset:{2816*b}')
        a('s_mov_b64 exec, 0xffff')
        for b in blks: a(f'ds_write_b64 {v(OA)}, {v(16*b+10,2)} offset:{2816*b+32}')
        a('s_mov_b64 exec, -1')
        a('s_waitcnt lgkmcnt(0)\ns_barrier')
    if cfg.stamps:
        stamp(a, cfg, 3); stamp_out(a, cfg, 0, 8, 4)
    a('s_endpgm')

    a('L1_notq:')
    a('s_cmp_ge_u32 s26, 30\ns_cbranch_scc1 L1_gate')
    a('''s_sub_u32 s33, s26, 20
         s_cmp_ge_u32 s33, 5
         s_cselect_b32 s34, 1, 0
         s_mul_i32 s35, s34, 5
         s_sub_u32 s35, s33, s35       ; cg
         s_lshl_b32 s36, s25, 1
         s_add_u32 s36, s36, s34       ; sp''')
    if cfg.rot:
        a('s_lshl_b32 s42, s35, 1\ns_add_u32 s42, s42, s25\ns_cmp_ge_u32 s42, 10\ns_cselect_b32 s43, 10, 0\ns_sub_u32 s42, s42, s43')
    else: a('s_mov_b32 s42, 0')
    a('s_cmp_lt_u32 s24, 4\ns_cbranch_scc1 L1_fc')
    DF = cfg.DF
    a('''s_sub_u32 s46, s24, 4
         v_lshrrev_b32 v2, 5, v0
         v_lshlrev_b32 v2, 3, v2
         v_bfe_u32 v3, v0, 3, 2
         v_add_u32 v2, v2, v3
         v_mul_u32_u24 v2, 40960, v2
         v_and_b32 v3, 7, v0
         v_lshrrev_b32 v4, 4, v0
         v_xor_b32 v3, v3, v4
         v_lshl_add_u32 v10, v3, 4, v2
         v_xor_b32 v11, 64, v10''')
    a(f'v_add_u32 v11, {16*40960}, v11\nv_add_u32 v12, {4*40960}, v10\nv_add_u32 v13, {4*40960}, v11')
    a(f'''s_and_b32 s47, s46, 1
          s_mul_i32 s47, s47, {32*40960}
          s_lshr_b32 s48, s46, 1
          s_lshl_b32 s49, s36, 1
          s_add_u32 s48, s48, s49
          s_mul_i32 s48, s48, 1280
          s_add_u32 s40, s47, s48
          s_lshl_b32 s54, s42, 7
          s_add_u32 s54, s54, s40
          s_add_u32 s55, s40, 1280
          s_lshl_b32 s56, s46, 12''')
    a('s_waitcnt lgkmcnt(0)')
    srd(a, 12, 4, NBX)
    def fsl(sl):
        if sl > 9: return
        a(f's_add_u32 m0, s56, {(sl % 4) * 16384}')
        for u in range(4): dma(a, 10 + u, 12, 's54', 1024 if u < 3 else 0)
        a('s_add_u32 s54, s54, 128\ns_cmp_eq_u32 s54, s55\ns_cselect_b32 s54, s40, s54')
    for sl in range(DF): fsl(sl)
    for sl in range(10):
        a(f's_waitcnt vmcnt({4 * min(DF - 1, 9 - sl)})\ns_barrier')
        fsl(sl + DF)
    if cfg.wopf:
        srd(a, 16, 44, 819200)
        a('s_lshl_b32 s47, s33, 2\ns_add_u32 s47, s47, s46\ns_mul_i32 s48, s25, 5\ns_add_u32 s47, s47, s48\ns_cmp_ge_u32 s47, 40\ns_cselect_b32 s48, 40, 0\ns_sub_u32 s47, s47, s48\ns_mul_i32 s47, s47, 20480\nv_lshlrev_b32 v2, 6, v0')
        for u in range(5):
            a(f'buffer_load_dword v3, v2, s[16:19], s47 offen\ns_add_u32 s47, s47, 4096')
    if cfg.stamps:
        stamp(a, cfg, 1); stamp_out(a, cfg, 0, 8, 2)
    a('s_endpgm')
    a('L1_fc:')
    XBUF = [64, 96]; HB = [128, 136]; H64 = 144; ANG = 176; COS = 184
    A0, DA, DE, FIX, FA0, FA1, VO, PK = 192, 193, 194, 195, 196, 197, 198, 200
    a(f'''v_and_b32 v1, 15, v0
          v_lshrrev_b32 v2, 4, v0
          v_lshrrev_b32 v3, 1, v1
          v_xor_b32 v3, v3, v2
          v_lshlrev_b32 v3, 4, v3
          v_lshl_add_u32 {v(FA0)}, v1, 7, v3
          v_xor_b32 {v(FA1)}, 64, {v(FA0)}
          s_lshl_b32 s46, s35, 2
          s_add_u32 s46, s46, s24
          s_lshl_b32 s46, s46, 4           ; e0
          v_add_u32 v3, s46, v1            ; e
          v_cmp_eq_u32 vcc, 0, v3
          v_mov_b32 v4, 0xbf803f80
          v_cndmask_b32 {v(FIX)}, 0, v4, vcc
          v_cvt_f32_u32 v4, v3
          v_mul_f32 {v(DE)}, {f32(1/640)}, v4
          s_lshl_b32 s47, s42, 3
          v_add_u32 v4, s47, v2            ; 4*step0+g
          v_mul_u32_u24 v4, v4, v3
          v_mul_u32_u24 v5, 52429, v4
          v_lshrrev_b32 v5, 22, v5
          v_mul_u32_u24 v5, 80, v5
          v_sub_u32 v4, v4, v5
          v_cvt_f32_u32 v4, v4
          v_mul_f32 {v(A0)}, {f32(1/80)}, v4
          v_mul_u32_u24 v5, 3277, v3
          v_lshrrev_b32 v5, 16, v5         ; e/20
          v_mul_u32_u24 v5, 20, v5
          v_sub_u32 v4, v3, v5
          v_cvt_f32_u32 v4, v4
          v_mul_f32 {v(DA)}, {f32(1/20)}, v4
          v_mul_u32_u24 v4, 163840, v2
          v_lshl_add_u32 {v(VO)}, v1, 4, v4
          s_lshl_b32 s50, s46, 4
          s_mul_i32 s47, s36, 5120
          s_add_u32 s50, s50, s47''')
    a(f'''v_lshrrev_b32 v3, 1, v1
          v_and_b32 v4, 1, v1
          v_cvt_f32_u32 v4, v4
          v_mul_f32 v4, {f32(-0.25)}, v4     ; -phi
          v_lshlrev_b32 v5, 3, v2            ; 8g''')
    for mt in range(4):
        a(f'v_add_u32 v6, {8*mt}, v3')
        if mt == 0:
            a('v_cmp_eq_u32 vcc, 1, v1\nv_cndmask_b32 v6, v6, 32, vcc\nv_cndmask_b32 v9, v4, 0, vcc')
        else: a('v_mov_b32 v9, v4')
        a(f'v_cvt_f32_u32 v7, v6\nv_mul_f32 v7, {f32(1/64)}, v7')
        for p in range(2):
            a(f'v_add_u32 v8, {32*p}, v5\nv_mul_u32_u24 v8, v8, v6\nv_and_b32 v8, 63, v8\nv_cvt_f32_u32 v8, v8')
            a(f'v_mul_f32 v8, {f32(1/64)}, v8\nv_add_f32 {v(ANG)}, v8, v9')
            for j in range(1, 8): a(f'v_add_f32 {v(ANG+j)}, {v(ANG+j-1)}, v7')
            for j in range(8): a(f'v_cos_f32 {v(ANG+j)}, {v(ANG+j)}')
            for q in range(4): a(cvt(H64 + 8*mt + 4*p + q, ANG + 2*q))
    a('s_waitcnt lgkmcnt(0)')
    srd(a, 20, 8, NBX, WS_V)
    def gen_h(t):
        hb = HB[t % 2]; g = []
        g.append(f'v_add_f32 {v(ANG+1)}, {v(A0)}, {v(DE)}')
        g.append(f'v_cos_f32 {v(COS)}, {v(A0)}')
        g.append(f'v_sin_f32 {v(ANG)}, {v(A0)}')
        for j in range(1, 8):
            if j < 7: g.append(f'v_add_f32 {v(ANG+j+1)}, {v(ANG+j)}, {v(DE)}')
            g.append(f'v_cos_f32 {v(COS+j)}, {v(ANG+j)}')
            g.append(f'v_sin_f32 {v(ANG+j)}, {v(ANG+j)}')
        g.append(f'v_add_f32 {v(A0)}, {v(A0)}, {v(DA)}')
        for q in range(4): g.append(cvt(hb + q, COS + 2*q))
        for q in range(4): g.append(cvt(hb + 4 + q, ANG + 2*q))
        g.append(f'v_fract_f32 {v(A0)}, {v(A0)}')
        for q in range(4): g.append(f'v_or_b32 {v(hb+4+q)}, {v(hb+4+q)}, {v(FIX)}')
        return g
    def freads(t):
        return [f'ds_read_b128 {v(XBUF[t%2]+4*b,4)}, {v(FA1 if t & 1 else FA0)} offset:{((t>>1)%4)*16384 + 2048*b}' for b in range(8)]
    def fm(t):
        return [f'v_mfma_f32_16x16x32_bf16 {v(8*b+4*ty,4)}, {v(XBUF[t%2]+4*b,4)}, {v(HB[t%2]+4*ty,4)}, {v(8*b+4*ty,4) if t else 0}' for b in range(8) for ty in range(2)]
    for l in gen_h(0): a(l)
    for t in range(20):
        if t % 2 == 0: a('s_barrier')
        if t == 0:
            stamp(a, cfg, 1)
            for l in freads(0): a(l)
        else:
            fl = freads(t) + gen_h(t); m = fm(t-1); k = 0
            for i, x in enumerate(m):
                a(x)
                n = (len(fl) * (i + 1)) // len(m)
                while k < n: a(fl[k]); k += 1
        a('s_waitcnt lgkmcnt(0)')
    stamp(a, cfg, 2)
    for l in fm(19): a(l)
    for aa in range(2):
        for ty in range(2):
            for p in range(2):
                for h in range(2):
                    src = 8*(4*aa + 2*p + h) + 4*ty; d = PK + 16*aa + 8*ty + 4*p + 2*h
                    a(cvt(d, src)); a(cvt(d+1, src+2))
    def d2(aa, ty, mt): return 64 + 16*mt + 8*aa + 4*ty
    for mt in range(4):
        for p in range(2):
            for aa in range(2):
                for ty in range(2):
                    d = v(d2(aa, ty, mt), 4)
                    a(f'v_mfma_f32_16x16x32_bf16 {d}, {v(H64+8*mt+4*p,4)}, {v(PK+16*aa+8*ty+4*p,4)}, {d if p else 0}')
    for mt in range(4):
        for u in range(2):
            d = 8*mt + 4*u
            for aa in range(2):
                for ty in range(2): a(cvt(d + 2*aa + ty, d2(aa, ty, mt) + 2*u))
            a(f's_add_u32 s51, s50, {(8*mt+u)*81920}')
            a(f'buffer_store_dwordx4 {v(d,4)}, {v(VO)}, s[20:23], s51 offen {cfg.st}')
    if cfg.stamps:
        stamp(a, cfg, 3); a('s_waitcnt vmcnt(0)'); stamp(a, cfg, 4); stamp_out(a, cfg, 0, 8, 5)
    a('s_endpgm')

    a('L1_gate:')
    a('''s_lshl_b32 s33, s25, 1
         s_add_u32 s33, s33, s26
         s_sub_u32 s33, s33, 30
         s_lshl_b32 s33, s33, 3
         s_add_u32 s33, s33, s24
         s_lshl_b32 s33, s33, 4
         s_mul_i32 s34, s33, 1280
         v_and_b32 v1, 15, v0
         v_lshrrev_b32 v2, 4, v0
         v_lshlrev_b32 v3, 4, v1
         v_mul_u32_u24 v4, 1280, v2
         v_add_u32 v4, v4, v3
         s_waitcnt lgkmcnt(0)''')
    srd(a, 12, 4, NBX); srd(a, 16, 10, 1280); srd(a, 20, 8, 8192, WS_G)
    for u in range(5): a(f'buffer_load_dwordx4 {v(8+4*u,4)}, v3, s[16:19], 0 offen offset:{256*u}')
    for ps in range(4):
        for u in range(5): a(f'buffer_load_dwordx4 {v(28+20*ps+4*u,4)}, v4, s[12:15], s34 offen offset:{256*u}')
        a('s_add_u32 s34, s34, 5120')
    for ps in range(4):
        a(f's_waitcnt vmcnt({5*(3-ps)})')
        for i in range(20):
            a(f'v_dot2_f32_bf16 {v(110+ps)}, {v(28+20*ps+i)}, {v(8+i)}, {v(110+ps) if i else 0}')
    for sh in (8, 4, 2, 1):
        for ps in range(4): a(f'v_add_f32_dpp {v(110+ps)}, {v(110+ps)}, {v(110+ps)} row_ror:{sh} row_mask:0xf bank_mask:0xf')
    for ps in range(1, 4): a(f'v_cmp_eq_u32 vcc, {ps}, v1\nv_cndmask_b32 v110, v110, {v(110+ps)}, vcc')
    a(f'''v_mul_f32 v110, {f32(-math.log2(math.e))}, v110
          v_exp_f32 v110, v110
          v_add_f32 v110, 1.0, v110
          v_rcp_f32 v110, v110
          v_lshl_add_u32 v5, v1, 2, v2
          v_add_u32 v5, s33, v5
          v_lshlrev_b32 v5, 2, v5
          v_mov_b32 v6, {OOB}
          v_cmp_gt_u32 vcc, 4, v1
          v_cndmask_b32 v5, v6, v5, vcc
          buffer_store_dword v110, v5, s[20:23], 0 offen {cfg.st}''')
    if cfg.stamps:
        stamp(a, cfg, 1); stamp_out(a, cfg, 0, 8, 2)
    a('L1_exit:\ns_endpgm')

NS2 = 6
WB2, OB2 = 0, NS2 * 10240
VB2 = OB2 + NS2 * 8192
SB2 = VB2 + 20480
LDS2 = SB2 + 4 * 2816
def k2(a, cfg):
    def cvt(d, s0, s1=None): return f'v_cvt_pk_bf16_f32 {v(d)}, {v(s0)}, {v(s0+1 if s1 is None else s1)}'
    a('k2_kernel:')
    stamp(a, cfg, 0)
    a('s_load_dwordx2 s[4:5], s[0:1], 16\ns_load_dwordx2 s[8:9], s[0:1], 88\ns_load_dwordx2 s[6:7], s[0:1], 72')
    a('s_cmp_ge_u32 s2, 256\ns_cbranch_scc1 L2_exit')
    a('v_lshrrev_b32 v1, 6, v0\nv_and_b32 v0, 63, v0\nv_readfirstlane_b32 s24, v1')
    a('''s_and_b32 s25, s2, 7
         s_lshr_b32 s26, s2, 3
         s_and_b32 s33, s26, 7         ; ct
         s_lshr_b32 s34, s26, 3
         s_lshl_b32 s35, s25, 2
         s_add_u32 s35, s35, s34       ; p'
         s_sub_u32 s36, 64, s35
         s_cmp_eq_u32 s35, 0
         s_cselect_b32 s36, 32, s36    ; tbase1
         s_mul_i32 s41, s33, 160''')
    if cfg.rot:
        a('s_mul_i32 s42, s34, 3\ns_add_u32 s42, s42, s33\ns_cmp_ge_u32 s42, 10\ns_cselect_b32 s43, 10, 0\ns_sub_u32 s42, s42, s43')
    else: a('s_mov_b32 s42, 0')
    a('s_cmp_lt_u32 s24, 4\ns_cbranch_scc1 L2_c')
    a('s_cmp_ge_u32 s24, 6\ns_cbranch_scc1 L2_o')
    D = cfg.D2
    a('s_sub_u32 s46, s24, 4')
    for u in range(5):
        a(f'''v_add_u32 v2, {64*u}, v0
              v_mul_u32_u24 v3, 6554, v2
              v_lshrrev_b32 v3, 16, v3
              v_mul_u32_u24 v4, 10, v3
              v_sub_u32 v4, v2, v4
              v_and_b32 v6, 12, v3
              v_lshlrev_b32 v6, 1, v6
              v_lshrrev_b32 v7, 4, v3
              v_lshl_add_u32 v6, v7, 2, v6
              v_and_b32 v7, 3, v3
              v_add_u32 v6, v6, v7
              v_mul_u32_u24 v6, 1280, v6
              v_lshl_add_u32 {v(10+u)}, v4, 4, v6''')
    a(f'''s_mul_i32 s40, s46, 40960
          s_add_u32 s40, s40, s41
          s_mul_i32 s54, s42, 81920
          s_add_u32 s54, s54, s40
          s_add_u32 s55, s40, 819200
          s_mul_i32 s56, s46, 5120
          s_waitcnt lgkmcnt(0)''')
    srd(a, 12, 4, 819200)
    def wsl(sl):
        if sl > 9: return
        a(f's_add_u32 m0, s56, {WB2 + (sl % NS2) * 10240}')
        for u in range(5): dma(a, 10 + u, 12, 's54', 1024 if u < 4 else 0)
        a('s_add_u32 s54, s54, 81920\ns_cmp_eq_u32 s54, s55\ns_cselect_b32 s54, s40, s54')
    for sl in range(D): wsl(sl)
    for sl in range(10):
        a(f's_waitcnt vmcnt({5 * min(D - 1, 9 - sl)})\ns_barrier')
        wsl(sl + D)
    a('s_barrier')
    if cfg.stamps:
        stamp(a, cfg, 1); stamp_out(a, cfg, 1, 8, 2)
    a('s_endpgm')
    a('L2_o:')
    a(f'''s_sub_u32 s46, s24, 6
          v_lshrrev_b32 v2, 3, v0
          v_mul_u32_u24 v2, 81920, v2
          v_and_b32 v3, 7, v0
          v_lshrrev_b32 v4, 4, v0
          v_xor_b32 v3, v3, v4
          v_lshl_add_u32 v10, v3, 4, v2
          v_xor_b32 v11, 64, v10
          v_add_u32 v11, {8*81920}, v11
          v_add_u32 v12, {16*81920}, v10
          v_add_u32 v13, {16*81920}, v11
          s_cmp_eq_u32 s46, 0
          s_cselect_b32 s40, s35, s36
          s_mul_i32 s40, s40, 1280
          s_lshl_b32 s54, s42, 7
          s_add_u32 s54, s54, s40
          s_add_u32 s55, s40, 1280
          s_lshl_b32 s56, s46, 12
          s_waitcnt lgkmcnt(0)''')
    srd(a, 12, 8, NBX, WS_O)
    def osl(sl):
        if sl > 9: return
        a(f's_add_u32 m0, s56, {OB2 + (sl % NS2) * 8192}')
        for u in range(4): dma(a, 10 + u, 12, 's54', 1024 if u < 3 else 0)
        a('s_add_u32 s54, s54, 128\ns_cmp_eq_u32 s54, s55\ns_cselect_b32 s54, s40, s54')
    for sl in range(D): osl(sl)
    srd(a, 16, 8, NBX, WS_V)
    a('''s_mul_i32 s47, s33, 80
         s_sub_u32 s48, 640, s47
         s_cmp_lt_u32 s33, 4
         s_cselect_b32 s47, s47, s48    ; e0
         s_cselect_b32 s48, 1, -1       ; sgn
         s_mul_i32 s49, s46, 640
         s_mul_i32 s57, s35, 81920
         s_mul_i32 s58, s46, 10240''')
    for u in range(10):
        a(f'''v_add_u32 v2, s49, v0
              v_add_u32 v2, {64*u}, v2
              v_mul_u32_u24 v3, 3277, v2
              v_lshrrev_b32 v3, 18, v3       ; sp
              v_mul_u32_u24 v4, 80, v3
              v_sub_u32 v4, v2, v4           ; n
              v_mul_i32_i24 v4, s48, v4
              v_add_u32 v4, s47, v4          ; e'
              v_cmp_eq_u32 vcc, 320, v4
              v_cndmask_b32 v4, v4, 0, vcc
              v_mul_u32_u24 v3, 5120, v3
              v_lshl_add_u32 {v(20+u)}, v4, 4, v3''')
    out_cnt = []
    seq = [('o', sl) for sl in range(D) for _ in range(4)]
    for sl in range(10):
        last = max(i for i, x in enumerate(seq) if x == ('o', sl))
        a(f's_waitcnt vmcnt({len(seq) - 1 - last})\ns_barrier')
        nv = 2 if sl < 5 else 0
        for q in range(nv):
            u = 2 * sl + q
            a(f's_add_u32 m0, s58, {VB2 + u * 1024}')
            dma(a, 20 + u, 16, 's57', 0); seq.append(('v', u))
        if sl + D < 10:
            osl(sl + D); seq += [('o', sl + D)] * 4
    a('s_waitcnt vmcnt(0)\ns_barrier')
    if cfg.stamps:
        stamp(a, cfg, 1); stamp_out(a, cfg, 1, 8, 2)
    a('s_endpgm')
    a('L2_c:')
    ACC, FAC, MF = 0, 20, 40
    FB = [(56, 76), (80, 100)]
    OA0, OA1, WA, VA, SA, G, T = 104, 105, 106, 107, 108, 109, 110
    RA, GO = 112, 115
    TM = 118
    a(f'''v_and_b32 {v(TM)}, 15, v0            ; n
          v_lshrrev_b32 {v(TM+1)}, 4, v0       ; g
          s_cmp_lt_u32 s24, 2
          s_cselect_b32 s40, s35, s36
          s_and_b32 s46, s24, 1
          s_lshl_b32 s46, s46, 10
          s_add_u32 s40, s40, s46
          v_lshlrev_b32 {v(T)}, 6, {v(TM)}
          v_add_u32 {v(T)}, s40, {v(T)}        ; t
          v_lshlrev_b32 {v(TM+2)}, 2, {v(T)}
          s_waitcnt lgkmcnt(0)''')
    srd(a, 16, 8, 8192, WS_G)
    a(f'buffer_load_dword {v(G)}, {v(TM+2)}, s[16:19], 0 offen')
    srd(a, 20, 6, NBX)
    a(f'''v_lshrrev_b32 {v(TM+2)}, 1, {v(TM)}
          v_xor_b32 {v(TM+2)}, {v(TM+2)}, {v(TM+1)}
          v_lshlrev_b32 {v(TM+2)}, 4, {v(TM+2)}
          v_lshl_add_u32 {v(TM+2)}, {v(TM)}, 7, {v(TM+2)}
          s_lshl_b32 s46, s24, 11
          s_add_u32 s46, s46, {OB2}
          v_add_u32 {v(OA0)}, s46, {v(TM+2)}
          v_xor_b32 {v(OA1)}, 64, {v(OA0)}
          v_lshrrev_b32 {v(TM+2)}, 2, v0
          v_mul_u32_u24 {v(TM+2)}, 160, {v(TM+2)}
          v_and_b32 {v(TM+3)}, 3, v0
          v_lshl_add_u32 {v(WA)}, {v(TM+3)}, 3, {v(TM+2)}
          v_mul_u32_u24 {v(TM+2)}, 1280, {v(TM+1)}
          v_lshl_add_u32 {v(TM+2)}, {v(TM)}, 4, {v(TM+2)}
          v_add_u32 {v(VA)}, {VB2}, {v(TM+2)}
          s_mul_i32 s46, s24, 2816
          s_add_u32 s46, s46, {SB2}
          v_mul_u32_u24 {v(TM+2)}, 176, {v(TM)}
          v_lshl_add_u32 {v(TM+2)}, {v(TM+1)}, 3, {v(TM+2)}
          v_add_u32 {v(SA)}, s46, {v(TM+2)}
          s_mul_i32 s50, s40, 1280
          s_add_u32 s50, s50, s41''')
    for u in range(3):
        a(f'''v_add_u32 {v(TM+2)}, {64*u}, v0
              v_mul_u32_u24 {v(TM+3)}, 6554, {v(TM+2)}
              v_lshrrev_b32 {v(TM+3)}, 16, {v(TM+3)}
              v_mul_u32_u24 {v(TM+4)}, 10, {v(TM+3)}
              v_sub_u32 {v(TM+4)}, {v(TM+2)}, {v(TM+4)}
              v_lshlrev_b32 {v(TM+4)}, 4, {v(TM+4)}
              v_mul_u32_u24 {v(TM+5)}, 176, {v(TM+3)}
              v_add3_u32 {v(RA+u)}, {v(TM+5)}, {v(TM+4)}, s46
              v_mul_u32_u24 {v(TM+5)}, 81920, {v(TM+3)}
              v_add_u32 {v(GO+u)}, {v(TM+5)}, {v(TM+4)}''')
    a(f'v_mov_b32 {v(TM+2)}, {OOB}\nv_cmp_gt_u32 vcc, 32, v0\nv_cndmask_b32 {v(GO+2)}, {v(TM+2)}, {v(GO+2)}, vcc')
    one, neg = '1.0', '-1.0'
    a(f'''s_cmp_lt_u32 s33, 4
          s_cselect_b32 s63, -1.0, 1.0        ; -sigma
          s_cmp_lt_u32 s24, 2
          s_cselect_b32 s61, -1.0, 1.0        ; -kappa
          s_cselect_b32 s59, 0, 0x80000000
          s_xor_b32 s64, s63, s59             ; -sigma*kappa
          s_mov_b32 s60, 1.0
          s_mov_b32 s62, 0
          s_mov_b32 s65, 0
          s_cmp_lg_u32 s35, 0
          s_cbranch_scc1 L2_mgen
          s_mov_b32 s61, 0
          s_mov_b32 s64, 0
          s_cmp_lt_u32 s24, 2
          s_cbranch_scc1 L2_mgen
          s_mov_b32 s60, 0
          s_mov_b32 s62, 1.0
          s_mov_b32 s65, s63
          s_mov_b32 s63, 0
          L2_mgen:
          v_lshlrev_b32 {v(TM+1)}, 1, {v(TM+1)}''')
    for ks in range(4):
        for aa in range(2):
            a(f'''v_add_u32 {v(TM+2)}, {8*ks+aa}, {v(TM+1)}
                  v_mul_u32_u24 {v(TM+2)}, {v(TM+2)}, {v(T)}
                  v_and_b32 {v(TM+2)}, 2047, {v(TM+2)}
                  v_cvt_f32_u32 {v(TM+2)}, {v(TM+2)}
                  v_mul_f32 {v(TM+2)}, {f32(1/2048)}, {v(TM+2)}
                  v_cos_f32 {v(TM+3)}, {v(TM+2)}
                  v_sin_f32 {v(TM+4)}, {v(TM+2)}
                  v_mul_f32 {v(TM+5)}, s60, {v(TM+3)}
                  v_mul_f32 {v(TM+6)}, s62, {v(TM+3)}
                  v_mul_f32 {v(TM+8)}, s64, {v(TM+3)}
                  v_fmac_f32 {v(TM+6)}, s61, {v(TM+4)}
                  v_mul_f32 {v(TM+7)}, s63, {v(TM+4)}
                  v_fmac_f32 {v(TM+8)}, s65, {v(TM+4)}''')
            a(cvt(MF + 4*ks + 2*aa, TM+5)); a(cvt(MF + 4*ks + 2*aa + 1, TM+7))
    def reads(t):
        fw, fo = FB[t % 2]
        if t < 20:
            sl = t >> 1
            r = [f'ds_read_b128 {v(fo,4)}, {v(OA1 if t & 1 else OA0)} offset:{(sl % NS2) * 8192}']
            base = WB2 + (sl % NS2) * 10240 + (t & 1) * 5120
            for nt in range(5):
                r.append(f'ds_read_b64_tr_b16 {v(fw+4*nt,2)}, {v(WA)} offset:{base + 32*nt}')
                r.append(f'ds_read_b64_tr_b16 {v(fw+4*nt+2,2)}, {v(WA)} offset:{base + 32*nt + 2560}')
            return r
        return [f'ds_read_b128 {v(fw+4*nt,4)}, {v(VA)} offset:{(t-20)*5120 + 256*nt}' for nt in range(5)]
    def mf(t):
        fw, fo = FB[t % 2]
        if t < 20: return [f'v_mfma_f32_16x16x32_bf16 {v(ACC+4*nt,4)}, {v(fw+4*nt,4)}, {v(fo,4)}, {v(ACC+4*nt,4) if t else 0}' for nt in range(5)]
        return [f'v_mfma_f32_16x16x32_bf16 {v(FAC+4*nt,4)}, {v(fw+4*nt,4)}, {v(MF+4*(t-20),4)}, {v(FAC+4*nt,4) if t > 20 else 0}' for nt in (1, 2, 3, 4, 0)]
    a('''s_and_b32 s46, s33, 3
         s_cmp_eq_u32 s46, 0
         s_cselect_b32 s66, 0x10001, 0
         s_cmp_eq_u32 s33, 4
         s_cselect_b32 s68, 0x10001, 0
         s_mov_b32 s67, s66
         s_mov_b32 s69, s68''')
    def fix(t):
        fw = FB[t % 2][0]
        a(f'''v_cndmask_b32 {v(fw)}, {v(fw)}, {v(fw+1)}, s[68:69]
              v_cndmask_b32 {v(fw+2)}, {v(fw+2)}, {v(fw+3)}, s[68:69]
              v_cndmask_b32 {v(fw+1)}, {v(fw+1)}, 0, s[66:67]
              v_cndmask_b32 {v(fw+3)}, {v(fw+3)}, 0, s[66:67]''')
    for t in range(25):
        if t % 2 == 0 and t <= 20: a('s_barrier')
        if t == 0: stamp(a, cfg, 1)
        if t == 20: stamp(a, cfg, 2)
        r = reads(t) if t < 24 else []
        if t > 20: fix(t - 1)
        m = mf(t - 1) if t else []
        k = 0
        for i, x in enumerate(m):
            n = max((len(r) * (i + 1)) // len(m), 0)
            while k < n: a(r[k]); k += 1
            a(x)
        while k < len(r): a(r[k]); k += 1
        if t < 24: a('s_waitcnt lgkmcnt(0)')
    a(f's_waitcnt vmcnt(0)\nv_sub_f32 {v(TM)}, 1.0, {v(G)}')
    for i in range(20): a(f'v_mul_f32 {v(ACC+i)}, {v(ACC+i)}, {v(G)}')
    for nt in (1, 2, 3, 4, 0):
        for r in range(4): a(f'v_fmac_f32 {v(ACC+4*nt+r)}, {v(FAC+4*nt+r)}, {v(TM)}')
        a(cvt(56+2*nt, ACC+4*nt)); a(cvt(57+2*nt, ACC+4*nt+2))
        a(f'ds_write_b64 {v(SA)}, {v(56+2*nt,2)} offset:{32*nt}')
    a('s_waitcnt lgkmcnt(0)')
    for u in range(3): a(f'ds_read_b128 {v(80+4*u,4)}, {v(RA+u)}')
    for u in range(3): a(f's_waitcnt lgkmcnt({2-u})\nbuffer_store_dwordx4 {v(80+4*u,4)}, {v(GO+u)}, s[20:23], s50 offen {cfg.sto}')
    if cfg.stamps:
        stamp(a, cfg, 3); a('s_waitcnt vmcnt(0)'); stamp(a, cfg, 4); stamp_out(a, cfg, 1, 8, 5, tmp=112)
    a('L2_exit:\ns_endpgm')

KD = """.section .rodata,"a"
.p2align 6
.amdhsa_kernel {name}
  .amdhsa_next_free_vgpr {vgpr}
  .amdhsa_next_free_sgpr 102
  .amdhsa_accum_offset {vgpr}
  .amdhsa_group_segment_fixed_size 0
  .amdhsa_kernarg_size 96
  .amdhsa_user_sgpr_count 2
  .amdhsa_user_sgpr_kernarg_segment_ptr 1
  .amdhsa_system_sgpr_workgroup_id_x 1
.end_amdhsa_kernel
"""
def generate(cfg):
    a = Asm()
    a.raw(f'; @launch kernel=k1_kernel grid=(256,1,1) block=(512,1,1) lds={max(LDS1, 81920+1024)}')
    a.raw(f'; @launch kernel=k2_kernel grid=(256,1,1) block=(512,1,1) lds={LDS2}')
    a.raw('.amdgcn_target "amdgcn-amd-amdhsa--gfx950"\n.text\n.globl k1_kernel\n.p2align 8\n.type k1_kernel,@function')
    k1(a, cfg)
    a.raw('.globl k2_kernel\n.p2align 8\n.type k2_kernel,@function')
    k2(a, cfg)
    a.raw('L_code_end:')
    a.raw(KD.format(name='k1_kernel', vgpr=256))
    a.raw(KD.format(name='k2_kernel', vgpr=256 if cfg.stamps else 128))
    return a.render(True)
if __name__ == '__main__':
    cfg = Cfg()
    for kv in sys.argv[2:]:
        k, val = kv.split('=', 1); setattr(cfg, k, eval(val))
    open(sys.argv[1], 'w').write(generate(cfg))
```

```python
import sys
from dsl import *
AMP = 10
def amp(A, B, redB='max'):
    a = Asm()
    a.raw('.text\n.globl p_kernel\n.p2align 8\n.type p_kernel,@function')
    a('p_kernel:')
    a('s_load_dwordx2 s[8:9], s[0:1], 88\ns_cmp_lg_u32 s2, 0\ns_cbranch_scc1 LP_exit\ns_waitcnt lgkmcnt(0)')
    a('s_add_u32 s12, s8, 0x600000\ns_addc_u32 s13, s9, 0\ns_mov_b32 s14, 0x100000\ns_mov_b32 s15, 0x20000')
    for n, (X, red) in enumerate([(A, 'min'), (B, redB)]):
        kern, wave, idx, lo, hi = X
        neutral = '-1' if red == 'min' else '0'
        a(f'v_mov_b32 v10, {neutral}')
        for u in range(4):
            a(f'v_add_u32 v1, {64*u}, v0\nv_lshlrev_b32 v2, 8, v1\nv_add_u32 v2, {kern*0x10000 + wave*32 + idx*4}, v2')
            a('buffer_load_dword v3, v2, s[12:15], 0 offen\ns_waitcnt vmcnt(0)')
            a(f'v_subrev_u32 v4, {lo}, v1\nv_cmp_gt_u32 vcc, {hi-lo}, v4\nv_cndmask_b32 v3, {neutral}, v3, vcc\nv_{red}_u32 v10, v10, v3')
        a(f's_mov_b32 s{20+n}, {neutral}')
        for l in range(64): a(f'v_readlane_b32 s22, v10, {l}\ns_{red}_u32 s{20+n}, s{20+n}, s22')
    a(f's_sub_u32 s23, s21, s20\ns_min_u32 s23, s23, 5000\ns_mul_i32 s23, s23, {AMP}')
    a('s_memrealtime s[24:25]\ns_waitcnt lgkmcnt(0)\ns_add_u32 s23, s23, s24')
    a('LP_spin:\ns_memrealtime s[24:25]\ns_waitcnt lgkmcnt(0)\ns_sub_u32 s26, s24, s23\ns_cmp_lt_i32 s26, 0\ns_cbranch_scc1 LP_spin')
    a('LP_exit:\ns_endpgm')
    a.raw('''.section .rodata,"a"
.p2align 6
.amdhsa_kernel p_kernel
  .amdhsa_next_free_vgpr 16
  .amdhsa_next_free_sgpr 40
  .amdhsa_accum_offset 16
  .amdhsa_group_segment_fixed_size 0
  .amdhsa_kernarg_size 96
  .amdhsa_user_sgpr_count 2
  .amdhsa_user_sgpr_kernarg_segment_ptr 1
  .amdhsa_system_sgpr_workgroup_id_x 1
.end_amdhsa_kernel''')
    return a.render()
def make(src, dst, A, B, redB='max'):
    s = open(src).read().split('\n')
    n = 0
    while s[n].startswith('; @launch'): n += 1
    out = s[:n] + ['; @launch kernel=p_kernel grid=(1,1,1) block=(64,1,1) lds=0'] + s[n:]
    open(dst, 'w').write('\n'.join(out) + amp(A, B, redB))
if __name__ == '__main__':
    src = sys.argv[1]
    S0 = (0, 0, 0, 0, 256)
    make(src, 'p0.s', S0, S0, 'min')
    make(src, 'p1.s', S0, (0, 0, 0, 0, 256))
    make(src, 'p2.s', S0, (0, 0, 1, 0, 160))
    make(src, 'p3.s', S0, (0, 0, 2, 0, 160))
    make(src, 'p4.s', S0, (1, 0, 0, 0, 256), 'min')
    make(src, 'p5.s', S0, (1, 0, 4, 0, 256))
```

```python
import re
TRANS = ('v_exp_f32', 'v_log_f32', 'v_rcp_f32', 'v_rsq_f32', 'v_sqrt_f32', 'v_sin_f32', 'v_cos_f32')
def regs(tok):
    tok = tok.strip()
    tok = tok.lstrip('-')
    m = re.fullmatch(r'abs\((.*)\)|\|(.*)\|', tok)
    if m: tok = m.group(1) or m.group(2)
    m = re.fullmatch(r'([vas])(\d+)', tok)
    if m: return {(m.group(1), int(m.group(2)))}
    m = re.fullmatch(r'([vas])\[(\d+):(\d+)\]', tok)
    if m: return {(m.group(1), i) for i in range(int(m.group(2)), int(m.group(3)) + 1)}
    if tok == 'vcc': return {('s', 'vcc_lo'), ('s', 'vcc_hi')}
    if tok in ('vcc_lo', 'vcc_hi'): return {('s', tok)}
    if tok == 'exec': return {('s', 'exec')}
    if tok == 'm0': return {('s', 'm0')}
    return set()
class Ins:
    def __init__(self, text):
        self.text = text
        t = text.split(';')[0].strip()
        self.label = t.endswith(':')
        self.directive = t.startswith('.') and not self.label
        self.op = '' if (self.label or self.directive or not t) else t.split()[0]
        self.w = set(); self.r = set(); self.kind = 'none'; self.srcc = set(); self.passes = 0; self.dpp = False
        self.states = 0 if not self.op else 1
        if not self.op: return
        op = re.sub(r'_(e32|e64|dpp|sdwa)$', '', self.op)
        self.base = op
        rest = t[len(self.op):].strip()
        ops = [x.strip() for x in re.split(r',(?![^\[]*\])', rest)] if rest else []
        if ops:
            last = ops[-1].split()
            mods = last[1:]; ops[-1] = last[0] if last else ''
        else: mods = []
        self.mods = mods
        R = [regs(x) for x in ops]
        if op == 's_nop':
            self.states = int(ops[0], 0) + 1; self.kind = 'salu'
        elif op.startswith('v_mfma'):
            self.kind = 'mfma'; self.w = R[0]; self.r = R[1] | R[2] | R[3]; self.srcc = R[3]; self.ab = R[1] | R[2]
            self.passes = 8 if '32x32' in op else 4
        elif op.startswith('v_'):
            self.kind = 'valu'
            self.dpp = self.op.endswith('_dpp') or any(m.startswith(('row_', 'quad_perm', 'wave_')) for m in mods)
            if op.startswith('v_permlane') and 'swap' in op:
                self.w = R[0] | R[1]; self.r = R[0] | R[1]
            elif op.startswith(('v_add_co', 'v_sub_co', 'v_addc_co', 'v_subb_co')):
                self.w = R[0] | R[1]; self.r = set().union(*R[2:])
            else:
                self.w = R[0]; self.r = set().union(*R[1:]) if len(R) > 1 else set()
                if op.startswith(('v_fmac', 'v_dot2c', 'v_pk_fmac', 'v_writelane')) or self.dpp: self.r |= R[0]
                if op.startswith('v_cmpx'): self.w |= {('s', 'exec')}
        elif op.startswith('ds_'):
            self.kind = 'ds'
            if op.startswith(('ds_read', 'ds_bpermute', 'ds_permute', 'ds_swizzle')) or '_rtn_' in op:
                self.w = R[0]; self.r = set().union(*R[1:])
            else: self.r = set().union(*R)
        elif op.startswith(('buffer_', 'global_')):
            self.kind = 'vmem'
            self.lds = 'lds' in mods or '_lds_' in op
            if 'load' in op and not self.lds:
                self.w = R[0]; self.r = set().union(*R[1:])
            else:
                self.r = set().union(*R) if R else set()
                if 'atomic' in op and 'sc0' in mods: self.w = R[0]
            self.wide = R[0] if ('store' in op and op.endswith(('x3', 'x4')) and op.startswith('buffer')) else (R[1] if ('store' in op and op.endswith(('x3', 'x4'))) else set())
            if self.lds: self.r |= {('s', 'm0')}
        elif op.startswith('s_'):
            self.kind = 'salu'
            if op.startswith(('s_cmp', 's_cbranch', 's_branch', 's_waitcnt', 's_barrier', 's_endpgm', 's_setprio', 's_sleep', 's_bitcmp', 's_setpc')):
                self.r = set().union(*R) if R else set()
            else:
                self.w = R[0] if R else set(); self.r = set().union(*R[1:]) if len(R) > 1 else set()
                if 'saveexec' in op: self.w |= {('s', 'exec')}
        else:
            raise ValueError('unknown op ' + text)
def isv(s): return {x for x in s if x[0] in 'va'}
def iss(s): return {x for x in s if x[0] == 's'}
def need(p, c):
    n = 0
    if p.kind == 'valu':
        vw = isv(p.w); sw = iss(p.w)
        if c.kind == 'mfma' and vw & c.r: n = max(n, 2)
        if c.kind == 'valu':
            if c.base.startswith('v_permlane') and vw & c.r: n = max(n, 2)
            if c.dpp and vw & c.r: n = max(n, 2)
            if c.base in ('v_readlane_b32', 'v_readfirstlane_b32') and vw & c.r: n = max(n, 1)
            if p.base in TRANS and vw & c.r: n = max(n, 1)
            if sw & c.r: n = max(n, 4 if c.base in ('v_readlane_b32', 'v_writelane_b32') else 2)
            if p.base.startswith('v_dot') and vw & (c.r | c.w) and not (c.base == p.base): n = max(n, 3)
            if ('s', 'exec') in sw: n = max(n, 5)
        if c.kind == 'mfma' and ('s', 'exec') in sw: n = max(n, 4)
        if c.kind == 'vmem' and sw & c.r: n = max(n, 5)
        if c.kind == 'salu' and sw & c.r: n = max(n, 2)
        if p.base.startswith('v_dot') and c.kind in ('vmem', 'ds', 'mfma') and vw & c.r: n = max(n, 3)
    if p.kind == 'mfma':
        big = 8 if p.passes == 4 else 12
        if c.kind == 'mfma':
            if p.w & c.ab: n = max(n, big)
            if p.w & c.srcc and not (p.w == c.srcc and p.passes == c.passes): n = max(n, big - 2)
            if p.w & c.w and not (p.w == c.srcc): n = max(n, big - 2)
        elif c.kind in ('valu', 'vmem', 'ds'):
            if p.w & (c.r | c.w): n = max(n, big)
            if c.kind == 'valu' and p.srcc & c.w: n = max(n, 3 if p.passes == 4 else 7)
    if p.kind == 'salu' and ('s', 'm0') in p.w and c.kind == 'vmem' and getattr(c, 'lds', False): n = max(n, 1)
    if p.kind == 'vmem' and p.wide & c.w and c.kind in ('valu', 'mfma', 'ds', 'vmem'): n = max(n, 2)
    return n
class Asm:
    def __init__(self):
        self.lines = []
    def __call__(self, text):
        for l in text.split('\n'):
            l = l.strip()
            if l: self.lines.append(l)
    def raw(self, text): self.lines.append(('raw', text))
    def render(self, verbose=False):
        out = []; hist = []; npad = 0
        for l in self.lines:
            if isinstance(l, tuple): out.append(l[1]); continue
            if l.startswith(';'): out.append(l); continue
            i = Ins(l)
            if i.op:
                dist = 0; pad = 0
                for p in reversed(hist):
                    pad = max(pad, need(p, i) - dist)
                    dist += p.states
                    if dist > 20: break
                if pad > 0:
                    nop = Ins(f's_nop {pad-1}'); hist.append(nop); out.append('    ' + nop.text + ' ; hz'); npad += pad
                hist.append(i)
                if i.op in ('s_endpgm', 's_branch', 's_setpc_b64'): hist = []
                out.append('    ' + l)
            else: out.append(l)
        if verbose: print('hazard pad states', npad)
        return '\n'.join(out) + '\n'
def v(a, n=1): return f'v{a}' if n == 1 else f'v[{a}:{a+n-1}]'
def s(a, n=1): return f's{a}' if n == 1 else f's[{a}:{a+n-1}]'
def interleave(main, fill, start=0, every=1):
    out = []; fill = list(fill)
    for i, m in enumerate(main):
        out.append(m)
        if i >= start and (i - start) % every == 0 and fill: out.append(fill.pop(0))
    return out + fill

def cost(i):
    if i.kind == 'mfma': return 8
    if i.kind == 'valu' and (i.base in TRANS or i.base.startswith('v_permlane')): return 8
    return 4
def schedule(lines, prev=(), verbose=False, prio_bias=None):
    I = [Ins(l) for l in lines]
    n = len(I)
    preds = [set() for _ in range(n)]; succ = [set() for _ in range(n)]
    for j in range(n):
        for i in range(j):
            if (I[i].w & (I[j].r | I[j].w)) or (I[i].r & I[j].w):
                preds[j].add(i); succ[i].add(j)
    prio = [0] * n
    for i in reversed(range(n)):
        prio[i] = cost(I[i]) + max([prio[j] + 4 * need(I[i], I[j]) for j in succ[i]], default=0)
        if prio_bias: prio[i] += prio_bias(lines[i])
    done = set(); out = []; hist = [Ins(l) for l in prev]; t = 0; mf = -99; dsw = -99; stall = 0
    left = set(range(n))
    while left:
        best = None
        for j in left:
            if not preds[j] <= done: continue
            dist = 0; pad = 0
            for p in reversed(hist):
                pad = max(pad, need(p, I[j]) - dist); dist += p.states
                if dist > 20: break
            st = 4 * pad
            if I[j].kind == 'mfma': st = max(st, mf + 16 - t)
            if I[j].kind == 'ds' and 'write' in I[j].op: st = max(st, dsw - t)
            st = max(st, 0)
            key = (st, 0 if I[j].kind == 'mfma' else 1, -prio[j], j)
            if best is None or key < best[0]: best = (key, j, pad)
        (st, _, _, _), j, pad = best
        if pad: hist.append(Ins(f's_nop {pad-1}'))
        t += st; stall += st
        if I[j].kind == 'mfma': mf = t
        if I[j].kind == 'ds' and 'write' in I[j].op: dsw = t + (32 if 'b64' in I[j].op else 52 if 'b128' in I[j].op else 16)
        t += cost(I[j]); hist.append(I[j]); out.append(lines[j]); done.add(j); left.remove(j)
    if verbose: print(f'schedule: {n} instrs, est {t} cycles, stall {stall}')
    return out
```

```python
import sys, struct, math
from dsl import *
NAME = 'gated_mix__sliding_local_dilated__spectral_fnet__prompt_kernel'
def f32(x): return '0x%08x' % struct.unpack('<I', struct.pack('<f', x))[0]
WS_O, WS_V, WS_G, WS_S, WS_ST = 0, 0x280000, 0x500000, 0x510000, 0x600000
NBX = 2621440
class Cfg:
    D1 = 2
    DF = 3
    D2 = 4
    st = 'sc1'
    sto = 'sc1'
    stamps = False
    rot = 'r5x'
    codepf = True
    aslist = False
    SPIN = 200000
WB, XB, OB, VB = 0, 61440, 123648, 143360
TB = 75776
CNT = 123000
OIN = 61440
PX, PW, PWO, PG, POUT, PDBG, PWS = 4, 6, 8, 44, 46, 48, 50
WAVE, XCD, J, CT, PP, TB1, S2, CT160 = 24, 25, 26, 27, 28, 29, 30, 31
SS = 32
def srd(a, d, ptr, size, off=0):
    if off: a(f's_add_u32 {s(d)}, {s(ptr)}, {off}\ns_addc_u32 {s(d+1)}, {s(ptr+1)}, 0')
    else: a(f's_mov_b32 {s(d)}, {s(ptr)}\ns_mov_b32 {s(d+1)}, {s(ptr+1)}')
    a(f's_mov_b32 {s(d+2)}, {size}\ns_mov_b32 {s(d+3)}, 0x20000')
def cvt(d, s0, s1=None): return f'v_cvt_pk_bf16_f32 {v(d)}, {v(s0)}, {v(s0+1 if s1 is None else s1)}'
def lane(a, d): a(f'v_mbcnt_lo_u32_b32 {v(d)}, -1, 0\nv_mbcnt_hi_u32_b32 {v(d)}, -1, {v(d)}')

class Gen:
    def __init__(self, cfg):
        self.cfg = cfg; self.a = Asm(); self.uid = 0
    def stamp(self, i):
        if self.cfg.stamps: self.a(f"{'s_memtime' if self.cfg.stamps == 'cyc' else 's_memrealtime'} {s(80+2*i, 2)}")
    def stamp_out(self, tmp=40):
        a = self.a
        if not self.cfg.stamps: return
        a('s_waitcnt lgkmcnt(0)')
        srd(a, 76, PWS, 0x100000, WS_ST)
        a(f's_lshl_b32 s75, s2, 3\ns_add_u32 s75, s75, s{WAVE}\ns_lshl_b32 s75, s75, 5')
        a('s_mov_b64 exec, 1')
        a(f'v_mov_b32 {v(tmp+8)}, 0')
        for i in range(8): a(f'v_mov_b32 {v(tmp+i)}, {s(80+2*i)}')
        a(f'buffer_store_dwordx4 {v(tmp,4)}, {v(tmp+8)}, s[76:79], s75 offen')
        a(f'buffer_store_dwordx4 {v(tmp+4,4)}, {v(tmp+8)}, s[76:79], s75 offen offset:16')
    def dma(self, vo, srdn, so, m0step=1024, flags=''):
        self.a(f'buffer_load_dwordx4 {v(vo)}, {s(srdn,4)}, {so} offen {flags} lds')
        if m0step: self.a(f's_addk_i32 m0, {m0step}')
    def label(self, p):
        self.uid += 1; return f'L_{p}{self.uid}'
    def poll(self, srdn, soff, nl, t0):
        a = self.a; L = self.label('poll'); E = self.label('polle')
        lane(a, t0)
        a(f'v_lshlrev_b32 {v(t0)}, 2, {v(t0)}\ns_mov_b64 exec, {(1 << nl) - 1}\ns_mov_b32 s74, {self.cfg.SPIN}')
        a(f'''{L}:
              buffer_load_dword {v(t0+1)}, {v(t0)}, {s(srdn,4)}, {soff} offen sc1
              s_sub_u32 s74, s74, 1
              s_cbranch_scc1 {E}
              s_waitcnt vmcnt(0)
              v_cmp_ne_u32 vcc, 1, {v(t0+1)}
              s_cbranch_vccnz {L}
              {E}:
              s_mov_b64 exec, -1''')
    def zcheck(self, t0):
        srd(self.a, 36, PDBG, 256)
        self.poll(36, '0', 1, t0)
    def arrive(self, nloc, cbase, count, rbase, nrep, t0):
        a = self.a; E = self.label('arr')
        lane(a, t0)
        a(f'''v_lshlrev_b32 {v(t0)}, 8, {v(t0)}
              v_mov_b32 {v(t0+1)}, 1
              v_mov_b32 {v(t0+2)}, 1
              v_mov_b32 {v(t0+3)}, {CNT}
              s_and_b32 s72, s{XCD}, 1
              s_lshl_b32 s73, s72, 8
              s_add_u32 s73, s73, {cbase}
              s_lshl_b32 s72, s72, 2
              s_add_u32 s72, s72, {rbase}
              s_mov_b64 exec, 1
              s_waitcnt vmcnt(0)''')
        if nloc > 1:
            a(f'''ds_add_rtn_u32 {v(t0+3)}, {v(t0+3)}, {v(t0+1)}
                  s_waitcnt lgkmcnt(0)
                  v_cmp_eq_u32 vcc, {nloc-1}, {v(t0+3)}
                  s_cbranch_vccz {E}''')
        a(f'''buffer_atomic_add {v(t0+2)}, {v(t0)}, {s(SS,4)}, s73 offen sc0 sc1
              s_waitcnt vmcnt(0)
              v_cmp_eq_u32 vcc, {count-1}, {v(t0+2)}
              s_cbranch_vccz {E}
              s_mov_b64 exec, {(1 << nrep) - 1}
              buffer_store_dword {v(t0+1)}, {v(t0)}, {s(SS,4)}, s72 offen sc1
              {E}:
              s_mov_b64 exec, -1''')
    def call(self, lab): self.a(f's_call_b64 s[70:71], {lab}')

    def entry(self):
        a = self.a; cfg = self.cfg
        a(f'{NAME}:')
        self.stamp(0)
        a('s_load_dwordx4 s[4:7], s[0:1], 0\ns_load_dwordx2 s[8:9], s[0:1], 16\ns_load_dwordx8 s[44:51], s[0:1], 64')
        a('s_cmp_ge_u32 s2, 256\ns_cbranch_scc1 L_exit')
        a(f'v_lshrrev_b32 v1, 6, v0\nv_and_b32 v0, 63, v0\nv_readfirstlane_b32 s{WAVE}, v1')
        a(f's_and_b32 s{XCD}, s2, 7\ns_lshr_b32 s{J}, s2, 3')
        a('v_and_b32 v3, 7, v0\nv_lshrrev_b32 v4, 4, v0\nv_xor_b32 v3, v3, v4\nv_lshlrev_b32 v3, 4, v3')
        a(f's_cmp_ge_u32 s{J}, 20\ns_cbranch_scc1 L_notq')
        a(f'''s_lshr_b32 s52, s{J}, 2        ; a
              s_and_b32 s53, s{J}, 3         ; b
              s_and_b32 s54, s{XCD}, 1
              s_lshl_b32 s54, s54, 2
              s_add_u32 s54, s54, s53        ; hg
              s_mul_i32 s54, s54, 160        ; hg*160
              s_bfe_u32 s55, s{XCD}, 0x10001
              s_mul_i32 s56, s55, 5
              s_add_u32 s56, s56, s52        ; i
              s_mul_i32 s57, s56, 102
              s_min_u32 s57, s57, 912        ; j0
              s_lshr_b32 s58, s{XCD}, 2      ; par
              s_lshl_b32 s57, s57, 1
              s_add_u32 s57, s57, s58
              s_mul_i32 s57, s57, 1280''')
        if cfg.rot == 'r5x':
            a('s_add_u32 s59, s52, s53\ns_cmp_ge_u32 s59, 5\ns_cselect_b32 s60, 5, 0\ns_sub_u32 s59, s59, s60\ns_lshl_b32 s59, s59, 1\ns_add_u32 s59, s59, s55')
        elif cfg.rot == 'r2':
            a('s_add_u32 s59, s52, s53\ns_and_b32 s59, s59, 1\ns_mul_i32 s59, s59, 5')
        elif cfg.rot == 'r3':
            a('s_add_u32 s59, s52, s53\ns_mul_i32 s60, s59, 86\ns_lshr_b32 s60, s60, 8\ns_mul_i32 s60, s60, 3\ns_sub_u32 s59, s59, s60\ns_mul_i32 s59, s59, 3\ns_add_u32 s59, s59, s55')
        else: a('s_mov_b32 s59, 0')
        a(f's_cmp_lt_u32 s{WAVE}, 4\ns_cbranch_scc1 L_qc')
        a(f's_cmp_eq_u32 s{WAVE}, 7\ns_cbranch_scc1 L_qm')
        a(f's_cmp_lg_u32 s{WAVE}, 6\ns_cbranch_scc1 L_qw')

    def p2scalars(self):
        a = self.a
        a(f'''s_and_b32 s{CT}, s{J}, 7
              s_lshr_b32 s72, s{J}, 3
              s_and_b32 s{PP}, s{XCD}, 3
              s_lshl_b32 s{PP}, s{PP}, 2
              s_add_u32 s{PP}, s{PP}, s72
              s_lshl_b32 s{PP}, s{PP}, 1
              s_lshr_b32 s73, s{XCD}, 2
              s_add_u32 s{PP}, s{PP}, s73
              s_sub_u32 s{TB1}, 64, s{PP}
              s_cmp_eq_u32 s{PP}, 0
              s_cselect_b32 s{TB1}, 32, s{TB1}
              s_mul_i32 s{CT160}, s{CT}, 160
              s_mul_i32 s{S2}, s72, 3
              s_add_u32 s{S2}, s{S2}, s{CT}
              s_cmp_ge_u32 s{S2}, 10
              s_cselect_b32 s72, 10, 0
              s_sub_u32 s{S2}, s{S2}, s72''')
        srd(a, SS, PWS, 8192, WS_S)

    def subs(self):
        a = self.a
        a('S_ldsetup:')
        self.p2scalars()
        for u in range(5):
            a(f'''v_add_u32 v30, {64*u}, v0
                  v_mul_u32_u24 v31, 6554, v30
                  v_lshrrev_b32 v31, 16, v31
                  v_mul_u32_u24 v31, 1120, v31
                  v_lshl_add_u32 {v(32+u)}, v30, 4, v31''')
        a(f'''s_sub_u32 s67, s{WAVE}, 4
              s_lshl_b32 s66, s{S2}, 1
              s_add_u32 s66, s66, s67
              s_add_u32 s66, s66, 12
              s_cmp_ge_u32 s66, 20
              s_cselect_b32 s72, 20, 0
              s_sub_u32 s66, s66, s72
              s_mul_i32 s66, s66, 40960
              s_mul_i32 s67, s67, 5120''')
        srd(a, 40, PWO, 819200)
        a('s_setpc_b64 s[70:71]')
        a('S_woround:')
        a(f's_add_u32 m0, m0, s67\ns_add_u32 s72, s66, s{CT160}')
        for u in range(5): self.dma(32 + u, 40, 's72', 1024 if u < 4 else 0)
        a('s_add_u32 s66, s66, 163840\ns_cmp_ge_u32 s66, 819200\ns_cselect_b32 s72, 819200, 0\ns_sub_u32 s66, s66, s72')
        a('s_setpc_b64 s[70:71]')
    def woround(self, r):
        self.a(f's_mov_b32 m0, {[TB, TB + 20480, 0, 20480, 40960][r]}')
        self.call('S_woround')

    def qload(self):
        a = self.a; cfg = self.cfg; D = cfg.D1
        def ostore_setup():
            a(f'''s_cmp_eq_u32 s56, 0
                  s_cselect_b32 s60, 0, 7            ; lo
                  s_movk_i32 s61, 109
                  s_cmp_eq_u32 s56, 8
                  s_cselect_b32 s61, 103, s61
                  s_cmp_eq_u32 s56, 9
                  s_cselect_b32 s61, 112, s61        ; hi
                  s_sub_u32 s72, s{WAVE}, 4
                  s_mul_i32 s72, s72, 6
                  s_add_u32 s60, s60, s72
                  s_mul_i32 s68, s60, 2560
                  s_add_u32 s68, s68, s57
                  s_add_u32 s68, s68, s54
                  s_mul_i32 s60, s60, 176
                  s_add_u32 s60, s60, {OB}
                  s_mul_i32 s61, s61, 2560
                  s_add_u32 s61, s61, s57
                  s_min_u32 s22, s61, {NBX}
                  s_mov_b32 s20, s{PWS}
                  s_mov_b32 s21, s{PWS+1}
                  s_mov_b32 s23, 0x20000
                  v_mul_u32_u24 v30, 6554, v0
                  v_lshrrev_b32 v30, 16, v30
                  v_lshlrev_b32 v31, 4, v0
                  v_lshl_add_u32 v37, v30, 4, v31
                  v_add_u32 v37, s60, v37
                  v_mul_u32_u24 v30, 2400, v30
                  v_add_u32 v38, v30, v31''')
        a('v_lshrrev_b32 v2, 3, v0\nv_mul_u32_u24 v2, 2560, v2\nv_add_u32 v10, v2, v3\nv_xor_b32 v11, 64, v10\nv_add_u32 v11, 20480, v11')
        for pp in range(2, 14): a(f'v_add_u32 {v(10+pp)}, 40960, {v(8+pp)}')
        a('s_lshl_b32 s62, s59, 7\ns_add_u32 s62, s62, s57\ns_add_u32 s63, s57, 1280')
        a(f's_mov_b32 s14, {NBX}\ns_mov_b32 s15, 0x20000')
        self.stamp(4)
        a('s_waitcnt lgkmcnt(0)\ns_mov_b32 s12, s4\ns_mov_b32 s13, s5')
        def xhalf(h):
            if h > 19: return
            a(f's_mov_b32 m0, {XB + ((h >> 1) % 3) * 14336 + (h & 1) * 7168}')
            for u in range(7): self.dma(10 + 7 * (h & 1) + u, 12, 's62', 1024 if u < 6 else 0)
            if h & 1: a('s_add_u32 s62, s62, 128\ns_cmp_eq_u32 s62, s63\ns_cselect_b32 s62, s57, s62')
        xhalf(0); xhalf(1)
        a('s_branch L_qx2')
        a('L_qw:')
        a(f'''v_cmp_le_u32 vcc, 30, v0
              v_subrev_u32 v4, 30, v0
              v_mov_b32 v5, 3840
              v_cndmask_b32 v4, v0, v4, vcc        ; q
              v_cndmask_b32 v5, 0, v5, vcc
              v_mul_u32_u24 v6, 26, v4
              v_lshrrev_b32 v6, 8, v6
              v_mul_u32_u24 v6, 1120, v6
              v_lshl_add_u32 v5, v4, 4, v5
              v_add_u32 v10, v5, v6
              v_add_u32 v11, {2*3840}, v10''')
        for u in range(2, 8): a(f'v_add_u32 {v(10+u)}, {8*3840}, {v(8+u)}')
        a(f'''s_sub_u32 s60, s{WAVE}, 4
              s_mul_i32 s64, s60, {4*3840}
              s_add_u32 s64, s64, s54
              s_mul_i32 s62, s59, {2*122880}
              s_add_u32 s62, s62, s64
              s_add_u32 s63, s64, {20*122880}
              s_mul_i32 s65, s60, 7680
              s_mov_b32 s18, {640*3840}
              s_mov_b32 s19, 0x20000
              s_mov_b32 exec_hi, 0x0fffffff''')
        self.stamp(4)
        a('s_waitcnt lgkmcnt(0)\ns_mov_b32 s16, s6\ns_mov_b32 s17, s7')
        def wgrp(t):
            a(f's_add_u32 m0, s65, {WB + (t % 4) * 15360}')
            for u in range(8): self.dma(10 + u, 16, 's62', 960 if u < 7 else 0)
            a('s_add_u32 s62, s62, 122880\ns_cmp_eq_u32 s62, s63\ns_cselect_b32 s62, s64, s62')
        for t in range(D): wgrp(t)
        self.stamp(5)
        a('s_mov_b32 exec_hi, -1')
        self.call('S_ldsetup'); ostore_setup()
        a('s_mov_b32 exec_hi, 0x0fffffff')
        for t in range(20):
            n = 8 * min(D - 1, 19 - t) + (5 if t == 19 else 0)
            a(f's_waitcnt vmcnt({n})')
            if t == 0: self.stamp(6)
            a('s_barrier')
            if t + D < 20: wgrp(t + D)
            if t + D == 20: a('s_mov_b32 exec_hi, -1')
            if t >= 18: self.woround(t - 18)
        a('s_branch L_qtail')
        a('L_qx2:')
        for h in range(2, D + 1): xhalf(h)
        self.stamp(5)
        self.call('S_ldsetup'); ostore_setup()
        for t in range(20):
            n = max(0, min(19, t + D) - (t + 1))
            if t < 19: a(f's_waitcnt vmcnt({7 * n})')
            if t == 0: self.stamp(6)
            a('s_barrier')
            xhalf(t + D + 1)
            if t >= 18: self.woround(t - 18)
        a('L_qtail:')
        a('s_barrier')
        for r in (2, 3, 4): self.woround(r)
        a('s_waitcnt vmcnt(0)')
        self.stamp(1)
        a('s_barrier')
        a('s_mov_b32 exec_hi, 0x0fffffff')
        for m in range(7): a(f'ds_read_b128 {v(40+4*m,4)}, v37 offset:{3168*m}')
        for m in range(7):
            a(f's_waitcnt lgkmcnt({6-m})\nbuffer_store_dwordx4 {v(40+4*m,4)}, v38, s[20:23], s68 offen {cfg.st}')
            if m < 6: a(f's_add_u32 s68, s68, {18*2560}')
        a('s_mov_b32 exec_hi, -1')
        self.stamp(2)
        a('s_lshl_b32 s60, s58, 9\ns_lshl_b32 s61, s58, 10\ns_add_u32 s61, s61, 2048')
        self.arrive(3, 's60', 40, 's61', 4, 4)
        self.stamp(3)
        a('L_ldpoll:')
        a(f's_cmp_lg_u32 s{WAVE}, 4\ns_cbranch_scc1 L_ldG')
        a(f's_lshl_b32 s60, s{XCD}, 8\ns_add_u32 s60, s60, 2048')
        self.poll(SS, 's60', 2, 4)
        a('L_ldG:')
        self.stamp(7)
        a('s_barrier')
        self.stamp_out()
        a('s_endpgm')
        a('L_qm:')
        a(f'v_mov_b32 v4, {CNT}\nv_mov_b32 v5, 0\nds_write_b32 v4, v5')
        if cfg.codepf:
            a(f's_getpc_b64 s[36:37]\nL_pc:\ns_sub_u32 s36, s36, L_pc-{NAME}\ns_subb_u32 s37, s37, 0')
            a(f's_mov_b32 s38, L_code_end-{NAME}\ns_mov_b32 s39, 0x20000')
            a(f's_lshl_b32 s60, s{J}, 11\nv_lshlrev_b32 v2, 6, v0\ns_mov_b32 exec_hi, 0')
            a('buffer_load_dword v6, v2, s[36:39], s60 offen\ns_mov_b32 exec_hi, -1')
        a('s_waitcnt lgkmcnt(0)')
        self.call('S_ldsetup')
        for t in range(20):
            a('s_barrier')
            if t == 16: self.zcheck(4)
            if t >= 18: self.woround(t - 18)
        a('L_mtail:')
        a('s_barrier')
        for r in (2, 3, 4): self.woround(r)
        a(f'''s_mul_i32 s60, s{CT}, 80
              s_sub_u32 s61, 640, s60
              s_cmp_lt_u32 s{CT}, 4
              s_cselect_b32 s60, s60, s61
              s_cselect_b32 s61, 1, -1
              s_mul_i32 s62, s{PP}, 81920''')
        srd(a, 16, PWS, NBX, WS_V)
        a('s_waitcnt vmcnt(0)')
        self.stamp(1)
        a('s_barrier')
        a(f's_lshl_b32 s63, s{XCD}, 8\ns_add_u32 s63, s63, 4096')
        for u in range(5):
            a(f'''v_add_u32 v2, {64*u}, v0
                  v_mul_u32_u24 v7, 3277, v2
                  v_lshrrev_b32 v7, 18, v7
                  v_mul_u32_u24 v8, 80, v7
                  v_sub_u32 v8, v2, v8
                  v_mul_i32_i24 v8, s61, v8
                  v_add_u32 v8, s60, v8
                  v_cmp_ne_u32 vcc, 320, v8
                  v_mul_u32_u24 v7, 5120, v7
                  v_cndmask_b32 v8, 0, v8, vcc
                  v_lshl_add_u32 {v(20+u)}, v8, 4, v7''')
        self.poll(SS, 's63', 2, 4)
        self.stamp(2)
        a(f's_mov_b32 m0, {VB}')
        for ks in range(4):
            for u in range(5): self.dma(20 + u, 16, 's62', 1024, 'sc1')
            a('s_add_u32 s62, s62, 20480')
        a('s_waitcnt vmcnt(0)')
        self.stamp(3)
        a('s_branch L_ldG')

    def qcomp(self):
        a = self.a; cfg = self.cfg
        a('L_qc:')
        XA0, XA1, WA, TA, MC, MP, AND, SEL, CX, OA, OX = 200, 201, 202, 203, 204, 208, 212, 214, 216, 248, 249
        KOP, QOP, VM, VX, M, R, XP = 220, 112, 140, 156, 170, 178, 186
        F = [(112, 140), (156, 184)]
        a(f'''v_and_b32 v1, 15, v0            ; i
              v_lshrrev_b32 v2, 4, v0         ; g
              v_lshrrev_b32 v3, 1, v1
              v_xor_b32 v3, v3, v2
              v_lshlrev_b32 v3, 4, v3
              v_lshl_add_u32 v3, v1, 7, v3
              v_add_u32 {v(XA0)}, {XB}, v3
              v_xor_b32 {v(XA1)}, 64, {v(XA0)}
              v_lshrrev_b32 v3, 2, v0
              v_mul_u32_u24 v3, 480, v3
              s_mul_i32 s60, s{WAVE}, 40
              v_add_u32 v3, s60, v3
              v_and_b32 v4, 3, v0             ; c
              v_lshl_add_u32 {v(WA)}, v4, 3, v3
              v_add_u32 v3, 32, v3
              v_add_u32 v5, 320, v3
              v_cmp_eq_u32 vcc, 1, v4
              v_cndmask_b32 {v(TA)}, v3, v5, vcc
              v_cndmask_b32 {v(CX)}, 0, 1.0, vcc
              v_add_u32 v5, 160, v3
              v_cmp_eq_u32 vcc, 2, v4
              v_cndmask_b32 {v(TA)}, {v(TA)}, v5, vcc
              v_mov_b32 v5, 0x40000
              v_cmp_eq_u32 vcc, 3, v4
              v_cndmask_b32 {v(TA)}, {v(TA)}, v5, vcc
              v_mov_b32 {v(CX+1)}, {v(CX)}
              v_mov_b32 {v(CX+2)}, {v(CX)}
              v_mov_b32 {v(CX+3)}, {v(CX)}
              v_mul_u32_u24 v3, 176, v1
              v_add_u32 v3, {OB}, v3
              s_mul_i32 s60, s{WAVE}, 5
              v_add_u32 v4, s60, v2
              v_bfe_u32 v5, v4, 1, 1
              v_xor_b32 v4, v4, v5
              v_lshl_add_u32 {v(OA)}, v4, 3, v3
              s_add_u32 s60, s60, 4
              s_bfe_u32 s61, s60, 0x10001
              s_xor_b32 s60, s60, s61
              s_lshl_b32 s60, s60, 3
              v_lshl_add_u32 v3, v2, 1, v3
              v_add_u32 {v(OX)}, s60, v3
              v_lshlrev_b32 v3, 2, v2
              v_sub_u32 v3, v1, v3            ; d0 = i - 4g
              v_mov_b32 v5, 0xff800000
              v_mov_b32 v6, 0xffff
              v_mov_b32 v7, 0xffff0000''')
        for r in range(4):
            a(f'''v_subrev_u32 v4, {r}, v3
                  v_cmp_gt_u32 vcc, 8, v4
                  v_cmp_gt_i32 s[60:61], -8, v4
                  v_cmp_le_i32 s[62:63], 0, v4
                  v_cndmask_b32 {v(MC+r)}, v5, 0, vcc
                  v_cndmask_b32 {v(MP+r)}, v5, 0, s[60:61]''')
            if r % 2 == 0: a(f'v_cndmask_b32 {v(AND + r//2)}, 0, v6, s[62:63]')
            else: a(f'v_cndmask_b32 v8, 0, v7, s[62:63]\nv_or_b32 {v(AND + r//2)}, {v(AND + r//2)}, v8')
        a(f'''v_mov_b32 {v(SEL)}, 0
              v_mov_b32 {v(SEL+1)}, 0
              s_mov_b32 s60, 0x3f80
              s_mov_b32 s61, 0x3f800000
              v_writelane_b32 {v(SEL)}, s60, 16
              v_writelane_b32 {v(SEL)}, s61, 20
              v_writelane_b32 {v(SEL+1)}, s60, 24
              v_writelane_b32 {v(SEL+1)}, s61, 28''')
        for b in range(7): a(f'v_mov_b32 {v(KOP+4*b+2)}, 0\nv_mov_b32 {v(KOP+4*b+3)}, 0')
        a(f's_mov_b32 s60, {f32(20 ** -0.5 * math.log2(math.e))}\ns_mov_b32 s61, s60')
        a('s_waitcnt lgkmcnt(0)')
        self.p2scalars()
        def reads(t):
            fx, fw = F[t % 2]
            xo = ((t >> 1) % 3) * 14336; wo_ = WB + (t % 4) * 15360
            xr = [f'ds_read_b128 {v(fx+4*b,4)}, {v(XA1 if t & 1 else XA0)} offset:{xo + 2048*b}' for b in range(7)]
            wr = []
            for tt, (ad, o) in enumerate([(WA, 0), (WA, 160), (WA, 320), (TA, 0)]):
                wr.append(f'ds_read_b64_tr_b16 {v(fw+4*tt,2)}, {v(ad)} offset:{wo_+o}')
                wr.append(f'ds_read_b64_tr_b16 {v(fw+4*tt+2,2)}, {v(ad)} offset:{wo_+o+7680}')
            return wr + xr
        def mfmas(t):
            fx, fw = F[t % 2]; m = []
            for b in range(7):
                for tt in range(4):
                    acc = v(16*b + 4*tt, 4); c = acc if t else '0'
                    A, B = (v(fw+4*tt,4), v(fx+4*b,4)) if tt != 2 else (v(fx+4*b,4), v(fw+4*tt,4))
                    m.append(f'v_mfma_f32_16x16x32_bf16 {acc}, {A}, {B}, {c}')
            return m
        a('.p2align 3\ns_nop 0')
        for t in range(20):
            a('s_barrier')
            if t == 0: self.stamp(1)
            for l in (interleave(mfmas(t-1), reads(t)) if t else reads(0)): a(l)
            a('s_waitcnt lgkmcnt(0)')
        a('s_barrier')
        self.stamp(2)
        e = mfmas(19); E = e.append
        for b in range(7):
            for (d, tt) in [(QOP+4*b, 0), (KOP+4*b, 1), (VM+2*b, 2), (QOP+4*b+2, 3)]:
                E(cvt(d, 16*b+4*tt)); E(cvt(d+1, 16*b+4*tt+2))
            for q in (2, 3): E(f'v_permlane32_swap_b32 {v(QOP+4*b+q)}, {v(KOP+4*b+q)}')
            E(f'v_mfma_f32_16x16x32_bf16 {v(16*b,4)}, {v(KOP+4*b,4)}, {v(QOP+4*b,4)}, {v(MC,4)}')
            if b: E(f'v_mfma_f32_16x16x32_bf16 {v(16*b+4,4)}, {v(KOP+4*b-4,4)}, {v(QOP+4*b,4)}, {v(MP,4)}')
            E(f'v_mfma_f32_16x16x16_bf16 {v(16*b+8,4)}, {v(QOP+4*b+2,2)}, {v(SEL,2)}, {v(CX,4)}')
            if b:
                for r in range(4): E(f'v_max_f32 {v(16*b+r)}, {v(16*b+r)}, {v(16*b+4+r)}')
            E(f'v_max3_f32 {v(M+b)}, {v(16*b)}, {v(16*b+1)}, {v(16*b+2)}'); E(f'v_max_f32 {v(M+b)}, {v(M+b)}, {v(16*b+3)}')
            for q in range(2): E(cvt(VX+2*b+q, 16*b+8+2*q))
        for m0 in (M, M + 4):
            E(f'v_permlane32_swap_b32 {v(m0)}, {v(m0+1)}'); E(f'v_permlane32_swap_b32 {v(m0+2)}, {v(m0+3)}')
            E(f'v_max_f32 {v(m0)}, {v(m0)}, {v(m0+1)}'); E(f'v_max_f32 {v(m0+2)}, {v(m0+2)}, {v(m0+3)}')
            E(f'v_permlane16_swap_b32 {v(m0)}, {v(m0+2)}')
            E(f'v_max_f32 {v(m0+1)}, {v(m0)}, {v(m0+2)}')
            E(f'v_mul_f32 {v(m0)}, s60, {v(m0+1)}'); E(f'v_mul_f32 {v(m0+2)}, s60, {v(m0+1)}')
            E(f'v_permlane16_swap_b32 {v(m0)}, {v(m0+2)}')
            E(f'v_mov_b32 {v(m0+1)}, {v(m0)}'); E(f'v_mov_b32 {v(m0+3)}, {v(m0+2)}')
            E(f'v_permlane32_swap_b32 {v(m0)}, {v(m0+1)}'); E(f'v_permlane32_swap_b32 {v(m0+2)}, {v(m0+3)}')
        for b in range(7):
            h = b & 1; mp = v(M + (b & ~1), 2); rp = v(R + (b & ~1), 2)
            for q in range(2):
                E(f'v_pk_fma_f32 {v(16*b+2*q,2)}, {v(16*b+2*q,2)}, s[60:61], {mp} op_sel:[0,0,{h}] op_sel_hi:[1,0,{h}] neg_lo:[0,0,1] neg_hi:[0,0,1]')
            for r in range(4): E(f'v_exp_f32 {v(16*b+r)}, {v(16*b+r)}')
            E(cvt(16*b+12, 16*b)); E(cvt(16*b+13, 16*b+2))
            if b:
                for q in range(2): E(f'v_and_b32 {v(16*b+14+q)}, {v(16*b+12+q)}, {v(AND+q)}')
                for q in range(2): E(f'v_xor_b32 {v(16*b+12+q)}, {v(16*b+12+q)}, {v(16*b+14+q)}')
            for (dst, vv) in [(16*b+4, VX), (16*b, VM)]:
                if b: E(f'v_mfma_f32_16x16x32_bf16 {v(dst,4)}, {v(vv+2*b-2,4)}, {v(16*b+12,4)}, 0')
                else: E(f'v_mfma_f32_16x16x16_bf16 {v(dst,4)}, {v(vv,2)}, {v(12,2)}, 0')
            E(f'v_rcp_f32 {v(16*b+6)}, {v(16*b+5)}')
            for q in range(2): E(f'v_pk_mul_f32 {v(16*b+2*q,2)}, {v(16*b+2*q,2)}, {v(16*b+6,2)} op_sel_hi:[1,0]')
            E(f'v_mul_f32 {v(16*b+4)}, {v(16*b+4)}, {v(16*b+6)}')
            E(cvt(16*b+8, 16*b)); E(cvt(16*b+9, 16*b+2))
            E(f'ds_write_b64 {v(OA)}, {v(16*b+8,2)} offset:{2816*b}')
            if h or b == 6:
                b0 = b - h
                E(cvt(16*b+10, 16*b0+4, 16*b+4))
                E(f'ds_write_b16 {v(OX)}, {v(16*b+10)} offset:{2816*b0}')
                if h: E(f'ds_write_b16_d16_hi {v(OX)}, {v(16*b+10)} offset:{2816*b}')
        for l in schedule(e, verbose=True): a(l)
        a('s_waitcnt lgkmcnt(0)')
        self.stamp(3)
        a('s_barrier')

    def p2(self):
        a = self.a; cfg = self.cfg
        a('L_p2:')
        ACC, FAC, BUF, OF, RW = 0, 20, [40, 60], [80, 84], 88
        OA0, OA1, WAa, WAb, VA, G, DO0, DO1 = 248, 249, 250, 251, 252, 253, 254, 255
        MF = 0; T = 40; L = 41; N = 42; GG = 43; X = 44
        lane(a, L)
        a(f'''v_lshrrev_b32 {v(GG)}, 4, {v(L)}
              v_bfe_u32 {v(X)}, {v(L)}, 2, 2          ; rr
              v_lshl_add_u32 {v(X)}, {v(GG)}, 3, {v(X)}
              v_and_b32 {v(X+1)}, 1, {v(GG)}
              v_lshl_add_u32 {v(X)}, {v(X+1)}, 2, {v(X)}   ; row A
              v_xor_b32 {v(X+1)}, 4, {v(X)}                ; row B
              v_and_b32 {v(X+2)}, 3, {v(L)}
              v_lshlrev_b32 {v(X+2)}, 3, {v(X+2)}
              s_movk_i32 s60, 160
              v_mad_u32_u24 {v(WAa)}, {v(X)}, s60, {v(X+2)}
              v_mad_u32_u24 {v(WAb)}, {v(X+1)}, s60, {v(X+2)}
              v_add_u32 {v(DO0)}, {TB}, {v(WAa)}
              v_add_u32 {v(DO1)}, {TB}, {v(WAb)}''')
        rw = []
        for p in range(8):
            for nt in range(5):
                rw.append(f'ds_read_b64_tr_b16 {v(RW+20*p+4*nt,2)}, {v(DO0)} offset:{5120*p + 32*nt}')
                rw.append(f'ds_read_b64_tr_b16 {v(RW+20*p+4*nt+2,2)}, {v(DO1)} offset:{5120*p + 32*nt}')
        su = Asm()
        su(f'''v_and_b32 {v(N)}, 15, {v(L)}
              s_cmp_lt_u32 s{WAVE}, 2
              s_cselect_b32 s52, s{PP}, s{TB1}
              s_and_b32 s60, s{WAVE}, 1
              s_lshl_b32 s60, s60, 10
              s_add_u32 s52, s52, s60
              v_lshlrev_b32 {v(T)}, 6, {v(N)}
              v_add_u32 {v(T)}, s52, {v(T)}
              v_lshlrev_b32 {v(G)}, 2, {v(T)}
              v_lshrrev_b32 {v(X)}, 1, {v(N)}
              v_xor_b32 {v(X)}, {v(X)}, {v(GG)}
              v_lshlrev_b32 {v(X)}, 4, {v(X)}
              v_lshl_add_u32 {v(X)}, {v(N)}, 7, {v(X)}
              s_mul_i32 s53, s{WAVE}, 20480
              s_add_u32 s53, s53, {OIN}
              v_add_u32 {v(OA0)}, s53, {v(X)}
              v_xor_b32 {v(OA1)}, 64, {v(OA0)}
              v_mul_u32_u24 {v(X)}, 1280, {v(GG)}
              v_lshl_add_u32 {v(X)}, {v(N)}, 4, {v(X)}
              v_add_u32 {v(VA)}, {VB}, {v(X)}
              s_mul_i32 s54, s52, 1280
              s_lshl_b32 s55, s{S2}, 7
              s_add_u32 s55, s55, s54
              s_add_u32 s56, s54, 1280
              s_add_u32 s57, s54, s{CT160}
              s_and_b32 s60, s{CT}, 3
              s_cmp_eq_u32 s60, 0
              s_cselect_b32 s66, 0x10001, 0
              s_cmp_eq_u32 s{CT}, 4
              s_cselect_b32 s68, 0x10001, 0
              s_mov_b32 s67, s66
              s_mov_b32 s69, s68
              s_cmp_lt_u32 s{CT}, 4
              s_cselect_b32 s63, -1.0, 1.0
              s_cmp_lt_u32 s{WAVE}, 2
              s_cselect_b32 s61, -1.0, 1.0
              s_cselect_b32 s59, 0, 0x80000000
              s_cselect_b32 s58, 0, 1
              s_xor_b32 s64, s63, s59
              s_cmp_eq_u32 s{PP}, 0
              s_cselect_b32 s61, 0, s61
              s_cselect_b32 s64, 0, s64
              s_cselect_b32 s58, s58, 0
              s_cmp_eq_u32 s58, 1
              s_cselect_b32 s60, 0, 1.0
              s_cselect_b32 s62, 1.0, 0
              s_cselect_b32 s65, s63, 0
              s_cselect_b32 s63, 0, s63
              v_lshlrev_b32 {v(X+10)}, 1, {v(GG)}''')
        srd(su, 12, PWS, NBX, WS_O); srd(su, 16, PWS, 8192, WS_G); srd(su, 20, POUT, NBX)
        for ks in range(4):
            for aa in range(2):
                su(f'''v_add_u32 {v(X)}, {8*ks+aa}, {v(X+10)}
                      v_mul_u32_u24 {v(X)}, {v(X)}, {v(T)}
                      v_and_b32 {v(X)}, 2047, {v(X)}
                      v_cvt_f32_u32 {v(X)}, {v(X)}
                      v_mul_f32 {v(X)}, {f32(1/2048)}, {v(X)}
                      v_cos_f32 {v(X+1)}, {v(X)}
                      v_sin_f32 {v(X+2)}, {v(X)}
                      v_mul_f32 {v(X+3)}, s60, {v(X+1)}
                      v_mul_f32 {v(X+4)}, s62, {v(X+1)}
                      v_mul_f32 {v(X+6)}, s64, {v(X+1)}
                      v_fmac_f32 {v(X+4)}, s61, {v(X+2)}
                      v_mul_f32 {v(X+5)}, s63, {v(X+2)}
                      v_fmac_f32 {v(X+6)}, s65, {v(X+2)}''')
                su(cvt(MF + 4*ks + 2*aa, X+3)); su(cvt(MF + 4*ks + 2*aa + 1, X+5))
        k = 0
        for i, l in enumerate(su.lines):
            a(l)
            if i % 2 == 1 and k < len(rw) and not l.startswith('s_cmp'):
                a(rw[k]); k += 1
                if k % 8 == 0: a('s_waitcnt lgkmcnt(6)')
        while k < len(rw):
            a(rw[k]); k += 1
            if k % 8 == 0: a('s_waitcnt lgkmcnt(6)')
        a(f'''v_lshrrev_b32 {v(X)}, 3, {v(L)}
              v_mul_u32_u24 {v(X)}, 81920, {v(X)}
              v_and_b32 {v(X+1)}, 7, {v(L)}
              v_xor_b32 {v(X+1)}, {v(X+1)}, {v(GG)}
              v_lshl_add_u32 {v(DO0)}, {v(X+1)}, 4, {v(X)}
              v_xor_b32 {v(DO1)}, 64, {v(DO0)}
              v_add_u32 {v(DO1)}, {8*81920}, {v(DO1)}
              s_mov_b32 m0, s53
              s_waitcnt vmcnt(0) lgkmcnt(0)''')
        self.stamp(4)
        a('s_barrier')
        self.stamp(5)
        def osl(i):
            if i > 9: return []
            return [f'buffer_load_dwordx4 {v(DO0)}, s[12:15], s55 offen sc1 lds', 's_addk_i32 m0, 1024', 's_add_u32 s72, s55, 128',
                    f'buffer_load_dwordx4 {v(DO1)}, s[12:15], s55 offen sc1 lds', 's_addk_i32 m0, 1024', 's_cmp_eq_u32 s72, s56\ns_cselect_b32 s55, s54, s72']
        D = cfg.D2
        for i in range(D):
            for l in osl(i): a(l)
            if i == 0: a(f'buffer_load_dword {v(G)}, {v(G)}, s[16:19], 0 offen sc1')
        def vreads(ks): return [f'ds_read_b128 {v(BUF[ks%2]+4*nt,4)}, {v(VA)} offset:{ks*5120 + 256*nt}' for nt in range(5)]
        def wreads(t):
            r = []
            for nt in range(5):
                r.append(f'ds_read_b64_tr_b16 {v(BUF[t%2]+4*nt,2)}, {v(WAa)} offset:{5120*t + 32*nt}')
                r.append(f'ds_read_b64_tr_b16 {v(BUF[t%2]+4*nt+2,2)}, {v(WAb)} offset:{5120*t + 32*nt}')
            return r
        for l in vreads(0) + vreads(1): a(l)
        for ks in range(4):
            fw = BUF[ks % 2]
            a(f's_waitcnt lgkmcnt({5 if ks < 3 else 10})')
            a(f'''v_cndmask_b32 {v(fw)}, {v(fw)}, {v(fw+1)}, s[68:69]
                  v_cndmask_b32 {v(fw+2)}, {v(fw+2)}, {v(fw+3)}, s[68:69]
                  v_cndmask_b32 {v(fw+1)}, {v(fw+1)}, 0, s[66:67]
                  v_cndmask_b32 {v(fw+3)}, {v(fw+3)}, 0, s[66:67]''')
            for nt in (1, 2, 3, 4, 0):
                a(f'v_mfma_f32_16x16x32_bf16 {v(FAC+4*nt,4)}, {v(fw+4*nt,4)}, {v(MF+4*ks,4)}, {v(FAC+4*nt,4) if ks else 0}')
            if ks < 2:
                for l in vreads(ks + 2): a(l)
            if ks == 2:
                for l in wreads(0): a(l)
        issued = D
        def oread(t): return f'ds_read_b128 {v(OF[t%2],4)}, {v(OA1 if t & 1 else OA0)} offset:{(t>>1)*2048}'
        def vm(sl):
            n = 2 * (min(issued, 10) - 1 - sl) + (1 if sl == 0 else 0)
            return f's_waitcnt vmcnt({n})'
        a(vm(0)); self.stamp(6); a(oread(0))
        fill = []
        X2 = 40
        SA, RA, GO, G1 = 40, 41, 42, 44
        fin = Asm()
        lane(fin, 46)
        fin(f'''v_and_b32 v47, 15, v46
                v_lshrrev_b32 v48, 4, v46
                v_mul_u32_u24 v47, 176, v47
                v_lshl_add_u32 v47, v48, 3, v47
                v_add_u32 {v(SA)}, s53, v47
                v_mul_u32_u24 v47, 6554, v46
                v_lshrrev_b32 v47, 16, v47
                v_lshlrev_b32 v48, 4, v46
                v_lshl_add_u32 v49, v47, 4, v48
                v_add_u32 {v(RA)}, s53, v49
                v_mul_u32_u24 v47, {81920-160}, v47
                v_add_u32 {v(GO)}, v47, v48
                v_sub_f32 {v(G1)}, 1.0, {v(G)}
                v_mov_b32 {v(G1+1)}, {v(G)}''')
        for q in range(10): fin(f'v_pk_mul_f32 {v(FAC+2*q,2)}, {v(FAC+2*q,2)}, {v(G1,2)} op_sel_hi:[1,0]')
        fin = fin.lines
        for t in range(20):
            nxt = t + 1
            pre = []
            if nxt < 20:
                if nxt % 2 == 0: pre.append(vm(nxt >> 1))
                pre.append(oread(nxt))
            wr = wreads(nxt) if nxt < 12 else []
            extra = []
            if t % 2 == 0 and issued < 10:
                extra = osl(issued); issued += 1
            for l in pre: a(l)
            for nt in range(5):
                for l in wr[2*nt:2*nt+2]: a(l)
                young = (1 if nxt < 20 else 0) + len(wr[:2*nt+2])
                if t < 12: young_w = young + (8 - 2*nt)
                else: young_w = 99
                if t == 0: young_w = young
                w = min(young_w, young if nt == 0 and t >= 12 else 99)
                if w < 16: a(f's_waitcnt lgkmcnt({w})')
                A = v(BUF[t%2]+4*nt,4) if t < 12 else v(RW+20*(t-12)+4*nt,4)
                a(f'v_mfma_f32_16x16x32_bf16 {v(ACC+4*nt,4)}, {A}, {v(OF[t%2],4)}, {v(ACC+4*nt,4) if t else 0}')
                if nt in (0, 2):
                    for l in extra[:3]: a(l)
                    extra = extra[3:]
                if t >= 13:
                    for _ in range(2 if nt else 0):
                        if fin: a(fin.pop(0))
        assert not fin
        e = []
        for nt in range(5):
            for q in range(2): e.append(f'v_pk_fma_f32 {v(ACC+4*nt+2*q,2)}, {v(ACC+4*nt+2*q,2)}, {v(G1,2)}, {v(FAC+4*nt+2*q,2)} op_sel:[0,1,0] op_sel_hi:[1,1,1]')
            e.append(cvt(50+2*nt, ACC+4*nt)); e.append(cvt(51+2*nt, ACC+4*nt+2))
            e.append(f'ds_write_b64 {v(SA)}, {v(50+2*nt,2)} offset:{32*nt}')
        for l in e: a(l)
        a('s_mov_b32 exec_hi, 0x0fffffff\ns_waitcnt lgkmcnt(0)')
        for u in range(3): a(f'ds_read_b128 {v(60+4*u,4)}, {v(RA)} offset:{1056*u}')
        for u in range(3):
            if u == 2: a('s_mov_b32 exec_hi, 0xff')
            a(f's_waitcnt lgkmcnt({2-u})\nbuffer_store_dwordx4 {v(60+4*u,4)}, {v(GO)}, s[20:23], s57 offen {cfg.sto}')
            if u < 2: a(f's_add_u32 s57, s57, {6*81920}')
        if cfg.stamps:
            a('s_waitcnt vmcnt(0)'); self.stamp(7); self.stamp_out(100)
        a('L_exit:\ns_endpgm')

    def fft(self):
        a = self.a; cfg = self.cfg
        a('L_notq:')
        a(f's_cmp_ge_u32 s{J}, 30\ns_cbranch_scc1 L_gate')
        a(f'''s_sub_u32 s52, s{J}, 20
              s_cmp_ge_u32 s52, 5
              s_cselect_b32 s53, 1, 0
              s_mul_i32 s54, s53, 5
              s_sub_u32 s54, s52, s54       ; cg
              s_lshl_b32 s55, s{XCD}, 1
              s_add_u32 s55, s55, s53       ; sp''')
        if cfg.rot: a(f's_add_u32 s59, s54, s{XCD}\ns_cmp_ge_u32 s59, 10\ns_cselect_b32 s60, 10, 0\ns_sub_u32 s59, s59, s60')
        else: a('s_mov_b32 s59, 0')
        a(f's_cmp_lt_u32 s{WAVE}, 4\ns_cbranch_scc1 L_fc')
        DF = cfg.DF
        a(f'''s_sub_u32 s60, s{WAVE}, 4
              v_lshrrev_b32 v2, 5, v0
              v_lshlrev_b32 v2, 3, v2
              v_bfe_u32 v4, v0, 3, 2
              v_add_u32 v2, v2, v4
              v_mul_u32_u24 v2, 40960, v2
              v_add_u32 v10, v3, v2
              v_xor_b32 v11, 64, v10
              v_add_u32 v11, {16*40960}, v11
              v_add_u32 v12, {4*40960}, v10
              v_add_u32 v13, {4*40960}, v11
              s_and_b32 s61, s60, 1
              s_mul_i32 s61, s61, {32*40960}
              s_lshr_b32 s62, s60, 1
              s_lshl_b32 s63, s55, 1
              s_add_u32 s62, s62, s63
              s_mul_i32 s62, s62, 1280
              s_add_u32 s57, s61, s62
              s_lshl_b32 s62, s59, 7
              s_lshl_b32 s65, s60, 12
              v_mov_b32 v4, {CNT}
              v_mov_b32 v5, 0
              ds_write_b32 v4, v5
              s_waitcnt lgkmcnt(0)''')
        srd(a, 12, PX, NBX)
        def fsl(sl):
            if sl > 9: return
            a(f's_add_u32 m0, s65, {(sl % 4) * 16384}\ns_add_u32 s63, s62, s57')
            for u in range(4): self.dma(10 + u, 12, 's63', 1024 if u < 3 else 0)
            a(f's_add_u32 s62, s62, {768 if sl & 1 else 640}\ns_cmp_ge_u32 s62, 1280\ns_cselect_b32 s63, 1280, 0\ns_sub_u32 s62, s62, s63')
        for sl in range(DF): fsl(sl)
        self.call('S_ldsetup')
        for sl in range(10):
            n = 4 * min(DF - 1, 9 - sl) + (5 if sl == 9 else 0)
            a(f's_waitcnt vmcnt({n})\ns_barrier')
            fsl(sl + DF)
            if sl >= 8: self.woround(sl - 8)
        a('L_nqtail:')
        a(f's_cmp_lg_u32 s{WAVE}, 7\ns_cbranch_scc1 L_nq456')
        self.zcheck(4)
        a('s_branch L_mtail')
        a('L_nq456:')
        a('s_barrier')
        for r in (2, 3, 4): self.woround(r)
        a('s_waitcnt vmcnt(0)')
        self.stamp(1)
        a('s_barrier')
        a('s_branch L_ldpoll')
        a('L_fc:')
        XBUF = [64, 96]; HB = [128, 136]; H64 = 144; ANG = 176; COS = 184
        A0, DA, DE, FIX, FA0, FA1, VO, SG, PK = 192, 193, 194, 195, 196, 197, 198, 199, 200
        a(f'''v_and_b32 v1, 15, v0
              v_lshrrev_b32 v2, 4, v0
              v_lshrrev_b32 v3, 1, v1
              v_xor_b32 v3, v3, v2
              v_lshlrev_b32 v3, 4, v3
              v_lshl_add_u32 {v(FA0)}, v1, 7, v3
              v_xor_b32 {v(FA1)}, 64, {v(FA0)}
              s_lshl_b32 s60, s54, 2
              s_add_u32 s60, s60, s{WAVE}
              s_lshl_b32 s60, s60, 4           ; e0
              v_add_u32 v3, s60, v1            ; e
              v_cmp_eq_u32 vcc, 0, v3
              v_mov_b32 v4, 0xbf803f80
              v_cndmask_b32 {v(FIX)}, 0, v4, vcc
              v_and_b32 v4, 1, v1
              v_mul_u32_u24 v4, 0x8000, v4
              v_lshl_add_u32 {v(SG)}, v4, 16, v4
              v_cvt_f32_u32 v4, v3
              v_mul_f32 {v(DE)}, {f32(1/640)}, v4
              s_lshl_b32 s61, s59, 3
              v_add_u32 v4, s61, v2            ; 4*step0+g
              v_mul_u32_u24 v4, v4, v3
              v_mul_u32_u24 v5, 52429, v4
              v_lshrrev_b32 v5, 22, v5
              v_mul_u32_u24 v5, 80, v5
              v_sub_u32 v4, v4, v5
              v_cvt_f32_u32 v4, v4
              v_mul_f32 {v(A0)}, {f32(1/80)}, v4
              v_mul_u32_u24 v5, 3277, v3
              v_lshrrev_b32 v5, 16, v5         ; e/20
              v_mul_u32_u24 v5, 20, v5
              v_sub_u32 v4, v3, v5
              v_cvt_f32_u32 v4, v4
              v_mul_f32 {v(DA)}, {f32(1/20)}, v4
              v_mul_u32_u24 v4, 163840, v2
              v_lshl_add_u32 {v(VO)}, v1, 4, v4
              s_lshl_b32 s62, s60, 4
              s_mul_i32 s61, s55, 5120
              s_add_u32 s62, s62, s61''')
        a(f'''v_lshrrev_b32 v3, 1, v1
              v_and_b32 v4, 1, v1
              v_cvt_f32_u32 v4, v4
              v_mul_f32 v4, {f32(-0.25)}, v4
              v_lshlrev_b32 v5, 3, v2''')
        for mt in range(4):
            a(f'v_add_u32 v6, {8*mt}, v3')
            if mt == 0: a('v_cmp_eq_u32 vcc, 1, v1\nv_cndmask_b32 v6, v6, 32, vcc\nv_cndmask_b32 v9, v4, 0, vcc')
            else: a('v_mov_b32 v9, v4')
            a(f'v_cvt_f32_u32 v7, v6\nv_mul_f32 v7, {f32(1/64)}, v7')
            a(f'v_mul_u32_u24 v8, v5, v6\nv_and_b32 v8, 63, v8\nv_cvt_f32_u32 v8, v8')
            a(f'v_mul_f32 v8, {f32(1/64)}, v8\nv_add_f32 {v(ANG)}, v8, v9')
            for j in range(1, 8): a(f'v_add_f32 {v(ANG+j)}, {v(ANG+j-1)}, v7')
            for j in range(8): a(f'v_cos_f32 {v(ANG+j)}, {v(ANG+j)}')
            a('v_and_b32 v8, 1, v6\nv_mul_u32_u24 v8, 0x8000, v8\nv_lshl_add_u32 v8, v8, 16, v8')
            for q in range(4): a(cvt(H64 + 8*mt + q, ANG + 2*q))
            for q in range(4): a(f'v_xor_b32 {v(H64+8*mt+4+q)}, {v(H64+8*mt+q)}, v8')
        a('s_waitcnt lgkmcnt(0)')
        srd(a, 20, PWS, NBX, WS_V)
        self.p2scalars()
        def gen_h(t):
            hb = HB[t % 2]; g = []
            if t % 4 >= 2: return [f'v_xor_b32 {v(hb+q)}, {v(hb+q)}, {v(SG)}' for q in range(8)]
            g.append(f'v_add_f32 {v(ANG+1)}, {v(A0)}, {v(DE)}')
            g.append(f'v_cos_f32 {v(COS)}, {v(A0)}'); g.append(f'v_sin_f32 {v(ANG)}, {v(A0)}')
            for j in range(1, 8):
                if j < 7: g.append(f'v_add_f32 {v(ANG+j+1)}, {v(ANG+j)}, {v(DE)}')
                g.append(f'v_cos_f32 {v(COS+j)}, {v(ANG+j)}'); g.append(f'v_sin_f32 {v(ANG+j)}, {v(ANG+j)}')
            g.append(f'v_add_f32 {v(A0)}, {v(A0)}, {v(DA)}')
            for q in range(4): g.append(cvt(hb + q, COS + 2*q))
            for q in range(4): g.append(cvt(hb + 4 + q, ANG + 2*q))
            g.append(f'v_fract_f32 {v(A0)}, {v(A0)}')
            for q in range(4): g.append(f'v_or_b32 {v(hb+4+q)}, {v(hb+4+q)}, {v(FIX)}')
            return g
        def freads(t):
            return [f'ds_read_b128 {v(XBUF[t%2]+4*b,4)}, {v(FA1 if t & 1 else FA0)} offset:{((t>>1)%4)*16384 + 2048*b}' for b in range(8)]
        def fm(t):
            return [f'v_mfma_f32_16x16x32_bf16 {v(8*b+4*ty,4)}, {v(XBUF[t%2]+4*b,4)}, {v(HB[t%2]+4*ty,4)}, {v(8*b+4*ty,4) if t else 0}' for b in range(8) for ty in range(2)]
        for l in gen_h(0): a(l)
        for t in range(20):
            if t % 2 == 0: a('s_barrier')
            if t == 0:
                self.stamp(1)
                for l in freads(0): a(l)
            else:
                rd = freads(t); fl = gen_h(t); m = fm(t-1); k = 0
                for i, x in enumerate(m):
                    a(x)
                    if i < 8: a(rd[i])
                    n = (len(fl) * (i + 1)) // len(m)
                    while k < n: a(fl[k]); k += 1
            a('s_waitcnt lgkmcnt(0)')
        a('s_barrier')
        self.stamp(2)
        e = fm(19); E = e.append
        for aa in range(2):
            for p in range(2):
                for ty in range(2):
                    for h in range(2):
                        src = 8*(4*aa + 2*p + h) + 4*ty; d = PK + 16*aa + 8*ty + 4*p + 2*h
                        E(cvt(d, src)); E(cvt(d+1, src+2))
        def d2(aa, ty, mt): return 64 + 16*mt + 8*aa + 4*ty
        for mt in range(4):
            for p in range(2):
                for aa in range(2):
                    for ty in range(2):
                        d = v(d2(aa, ty, mt), 4)
                        E(f'v_mfma_f32_16x16x32_bf16 {d}, {v(H64+8*mt+4*p,4)}, {v(PK+16*aa+8*ty+4*p,4)}, {d if p else 0}')
            for u in range(2):
                d = 8*mt + 4*u
                for aa in range(2):
                    for ty in range(2): E(cvt(d + 2*aa + ty, d2(aa, ty, mt) + 2*u))
                E(f's_add_u32 s{52+2*mt+u}, s62, {(8*mt+u)*81920}')
                E(f'buffer_store_dwordx4 {v(d,4)}, {v(VO)}, s[20:23], s{52+2*mt+u} offen {cfg.st}')
        for l in schedule(e, verbose=True, prio_bias=lambda l: 0): a(l)
        self.arrive(4, 1024, 48, 4096, 8, 40)
        self.stamp(3)
        a('s_barrier')
        a('s_branch L_p2')

    def gate(self):
        a = self.a; cfg = self.cfg
        a('L_gate:')
        a(f'''s_lshl_b32 s52, s{XCD}, 1
              s_add_u32 s52, s52, s{J}
              s_sub_u32 s52, s52, 30
              s_lshl_b32 s52, s52, 3
              s_add_u32 s52, s52, s{WAVE}
              s_lshl_b32 s53, s52, 4
              s_mul_i32 s54, s53, 1280
              v_and_b32 v1, 15, v0
              v_lshrrev_b32 v2, 4, v0
              v_lshlrev_b32 v3, 4, v1
              v_mul_u32_u24 v4, 1280, v2
              v_add_u32 v4, v4, v3
              v_mov_b32 v5, {CNT}
              v_mov_b32 v6, 0
              v_mov_b32 v7, 0
              ds_write_b32 v5, v6
              s_waitcnt lgkmcnt(0)''')
        self.p2scalars()
        a('s_cmp_lg_u32 s52, 0\ns_cbranch_scc1 L_gz')
        srd(a, 36, PDBG, 256)
        a(f'''v_lshlrev_b32 v8, 7, v0
              buffer_store_dwordx2 v[6:7], v8, {s(SS,4)}, 0 offen sc1
              v_mov_b32 v9, 1
              s_mov_b64 exec, 1
              s_waitcnt vmcnt(0)
              buffer_store_dword v9, v8, s[36:39], 0 offen sc1
              s_mov_b64 exec, -1
              L_gz:''')
        srd(a, 12, PX, NBX); srd(a, 16, PG, 1280); srd(a, 20, PWS, 8192, WS_G)
        GW, XR, AC = 40, 60, 140
        for u in range(5): a(f'buffer_load_dwordx4 {v(GW+4*u,4)}, v3, s[16:19], 0 offen offset:{256*u}')
        for ps in range(4):
            for u in range(5): a(f'buffer_load_dwordx4 {v(XR+20*ps+4*u,4)}, v4, s[12:15], s54 offen offset:{256*u}')
            a('s_add_u32 s54, s54, 5120')
        for ps in range(4):
            a(f's_waitcnt vmcnt({5*(3-ps)})')
            for i in range(20): a(f'v_dot2_f32_bf16 {v(AC+ps)}, {v(XR+20*ps+i)}, {v(GW+i)}, {v(AC+ps) if i else 0}')
        for sh in (8, 4, 2, 1):
            for ps in range(4): a(f'v_add_f32_dpp {v(AC+ps)}, {v(AC+ps)}, {v(AC+ps)} row_ror:{sh} row_mask:0xf bank_mask:0xf')
        for ps in range(1, 4): a(f'v_cmp_eq_u32 vcc, {ps}, v1\nv_cndmask_b32 {v(AC)}, {v(AC)}, {v(AC+ps)}, vcc')
        a(f'''v_mul_f32 {v(AC)}, {f32(-math.log2(math.e))}, {v(AC)}
              v_exp_f32 {v(AC)}, {v(AC)}
              v_add_f32 {v(AC)}, 1.0, {v(AC)}
              v_rcp_f32 {v(AC)}, {v(AC)}
              v_lshl_add_u32 v5, v1, 2, v2
              v_add_u32 v5, s53, v5
              v_lshlrev_b32 v5, 2, v5
              v_mov_b32 v6, 0x80000000
              v_cmp_gt_u32 vcc, 4, v1
              v_cndmask_b32 v5, v6, v5, vcc
              buffer_store_dword {v(AC)}, v5, s[20:23], 0 offen {cfg.st}
              s_waitcnt vmcnt(0)''')
        a(f's_cmp_lt_u32 s{WAVE}, 4\ns_cbranch_scc1 L_gc')
        self.call('S_ldsetup')
        self.woround(0); self.woround(1)
        a('s_branch L_nqtail')
        a('L_gc:')
        self.stamp(1)
        a('s_barrier')
        self.stamp(2)
        self.arrive(4, 1024, 48, 4096, 8, 40)
        self.stamp(3)
        a('s_barrier')
        a('s_branch L_p2')

    def generate(self):
        a = self.a; cfg = self.cfg
        if cfg.aslist: a.raw(f'; @launch kernel={NAME} grid=(256,1,1) block=(512,1,1) lds=163840')
        else: a.raw('; @launch grid=(256,1,1) block=(512,1,1) lds=163840')
        a.raw(f'.amdgcn_target "amdgcn-amd-amdhsa--gfx950"\n.text\n.globl {NAME}\n.p2align 8\n.type {NAME},@function')
        self.entry(); self.qload(); self.subs(); self.fft(); self.gate(); self.qcomp(); self.p2()
        a.raw('L_code_end:')
        a.raw(f'''.section .rodata,"a"
.p2align 6
.amdhsa_kernel {NAME}
  .amdhsa_next_free_vgpr 256
  .amdhsa_next_free_sgpr 102
  .amdhsa_accum_offset 256
  .amdhsa_group_segment_fixed_size 0
  .amdhsa_kernarg_size 96
  .amdhsa_user_sgpr_count 2
  .amdhsa_user_sgpr_kernarg_segment_ptr 1
  .amdhsa_system_sgpr_workgroup_id_x 1
.end_amdhsa_kernel''')
        return a.render(True)
if __name__ == '__main__':
    cfg = Cfg()
    for kv in sys.argv[2:]:
        k, val = kv.split('=', 1); setattr(cfg, k, eval(val))
    open(sys.argv[1], 'w').write(Gen(cfg).generate())
```
